```python
import torch

def _softmax(x, axis=-1):
    return torch.softmax(x, dim=axis)
def _gelu(x):
    return torch.nn.functional.gelu(x, approximate="tanh")
def _silu(x):
    return torch.nn.functional.silu(x)
def _sigmoid(x):
    return torch.sigmoid(x)
def _layernorm(x, axis=-1, eps=1e-5):
    m = x.mean(dim=axis, keepdim=True)
    v = x.var(dim=axis, keepdim=True, unbiased=False)
    return (x - m) / torch.sqrt(v + eps)
def _scatter_add(tgt, idx, src, axis=0):
    return tgt.clone().index_add_(axis, idx, src)
def _segment_sum(src, seg, n):
    out = torch.zeros((n,) + src.shape[1:], dtype=src.dtype)
    return out.index_add_(0, seg, src)
def _pad(x, pw):
    flat = tuple(v for pair in reversed(pw) for v in pair)
    return torch.nn.functional.pad(x, flat)

kernel_name = 'standalone__mha_block_cached__near_ridge'

def setup_inputs():

    _w = (lambda a: (lambda t: t.to(torch.bfloat16) if t.is_floating_point() else t)(torch.as_tensor(a)))
    B, Sq, D = 8, 128, 1024
    H, Sk, Dh = 32, 2048, 128
    return {
        "x": _w((lambda *s: torch.randn(*s, dtype=torch.bfloat16) * 0.8)(B, Sq, D)),
        "k_cache": _w((lambda *s: torch.randn(*s, dtype=torch.bfloat16) * 0.8)(B, H, Sk, Dh)),
        "v_cache": _w((lambda *s: torch.randn(*s, dtype=torch.bfloat16) * 0.05)(B, H, Sk, Dh)),
        "wq": _w((lambda *s: torch.randn(*s, dtype=torch.bfloat16) * 0.8)(D, H * Dh) * (D ** -0.5)),
        "wo": _w((lambda *s: torch.randn(*s, dtype=torch.bfloat16) * 0.05)(H * Dh, D) * ((H * Dh) ** -0.5)),
    }

def reference(x, k_cache, v_cache, wq, wo):
    B, Sq, D = x.shape
    H, Dh = 32, 128
    q = (lambda x, *d: x.permute(*d))((x @ wq).reshape(B, Sq, H, Dh), 0, 2, 1, 3)
    scores = torch.einsum("bhqd,bhkd->bhqk", q, k_cache) * (Dh ** -0.5)
    p = _softmax(scores, axis=-1)
    o = torch.einsum("bhqk,bhkd->bhqd", p, v_cache)
    return (lambda x, *d: x.permute(*d))(o, 0, 2, 1, 3).reshape(B, Sq, H * Dh) @ wo
```

```python
import sys, struct

def f2u(x):
    return struct.unpack("<I", struct.pack("<f", x))[0]

class Asm:
    def __init__(self):
        self.L = []
    def __call__(self, s):
        self.L.append("  " + s)
    def label(self, s):
        self.L.append(s + ":")
    def raw(self, s):
        self.L.append(s)
    def text(self):
        return "\n".join(self.L) + "\n"

def v(i, n=1):
    return "v%d" % i if n == 1 else "v[%d:%d]" % (i, i + n - 1)
def s(i, n=1):
    return "s%d" % i if n == 1 else "s[%d:%d]" % (i, i + n - 1)

KT = 16 * 1040
VT = 16 * 1088
SLOT = KT + VT
NSLOT = 4
CSCALE = 1.4426950408889634 / (128 ** 0.5)
THR = 4096.0

def kernel_header(a, name):
    a.raw(".globl %s" % name)
    a.raw(".p2align 8")
    a.raw(".type %s,@function" % name)
    a.label(name)

def kernel_desc(a, name, nv, ns, acc=None):
    if acc is None: acc = (nv + 3) // 4 * 4
    a.raw(".p2align 6")
    a.raw(".amdhsa_kernel %s" % name)
    a.raw("  .amdhsa_next_free_vgpr %d" % nv)
    a.raw("  .amdhsa_next_free_sgpr %d" % ns)
    a.raw("  .amdhsa_accum_offset %d" % acc)
    a.raw("  .amdhsa_group_segment_fixed_size 0")
    a.raw("  .amdhsa_kernarg_size 64")
    a.raw("  .amdhsa_user_sgpr_count 2")
    a.raw("  .amdhsa_user_sgpr_kernarg_segment_ptr 1")
    a.raw("  .amdhsa_system_sgpr_workgroup_id_x 1")
    a.raw(".end_amdhsa_kernel")

def gen_attn(a, name, rot=True):
    kernel_header(a, name)
    sX, sKp, sVp, sWQ = 4, 6, 8, 10
    sWO, sOUT, sDBG, sWS = 12, 14, 16, 18
    rK, rV, rX, rW, rO = 20, 24, 28, 32, 36
    sW, sQG, sKH, sB, sH = 40, 41, 42, 43, 44
    sT0, sT1, sT2 = 45, 46, 47
    sIslot = 48
    sCslot = 49
    sIt = 50
    sXo, sWo, sKo = 51, 52, 53
    sMA, sMB = 54, 55
    sThr, sDmin = 56, 57
    sC = 58
    sKH128 = 59
    vLane, vT0, vT1, vT2, vT3 = 1, 2, 3, 4, 5
    vKV, vXo, vWo = 6, 7, 8
    vKlo, vKhi, vVlo, vVhi = 9, 10, 11, 12
    vXr, vWr = 13, 14
    vA0, vA1, vA2, vA3 = 15, 16, 17, 18
    vL, vTs, vTs2 = 19, 20, 21
    vQ = 24
    vNM = 56
    vS = 72
    vP = 88
    vPb = 104
    vKf = 112
    vVf = 144
    vO = 176
    NV = 240

    a("s_cmp_ge_u32 s2, 256")
    a("s_cbranch_scc1 LA_end")
    a("s_load_dwordx8 s[4:11], s[0:1], 0")
    a("s_load_dwordx8 s[12:19], s[0:1], 32")
    a("v_lshrrev_b32 %s, 6, v0" % v(vT0))
    a("v_and_b32 %s, 63, v0" % v(vLane))
    a("v_readfirstlane_b32 %s, %s" % (s(sW), v(vT0)))
    a("s_and_b32 %s, s2, 7" % s(sT0))
    a("s_lshl_b32 %s, %s, 2" % (s(sT0), s(sT0)))
    a("s_lshr_b32 %s, s2, 3" % s(sT1))
    a("s_and_b32 %s, %s, 3" % (s(sT1), s(sT1)))
    a("s_add_u32 %s, %s, %s" % (s(sH), s(sT0), s(sT1)))
    a("s_lshr_b32 %s, s2, 5" % s(sB))
    a("s_and_b32 %s, %s, 3" % (s(sQG), s(sW)))
    a("s_lshr_b32 %s, %s, 2" % (s(sKH), s(sW)))
    a("s_lshl_b32 %s, %s, 7" % (s(sKH128), s(sKH)))
    l16, hl, g1, r_, c_ = vT0, vT1, vT2, vT3, vA0
    a("v_and_b32 %s, 15, %s" % (v(l16), v(vLane)))
    a("v_lshrrev_b32 %s, 5, %s" % (v(hl), v(vLane)))
    a("v_bfe_u32 %s, %s, 4, 1" % (v(g1), v(vLane)))
    a("v_bfe_u32 %s, %s, 2, 2" % (v(r_), v(vLane)))
    a("v_and_b32 %s, 1, %s" % (v(vA1), v(vLane)))
    a("v_lshlrev_b32 %s, 4, %s" % (v(vA1), v(vA1)))
    a("v_bfe_u32 %s, %s, 1, 1" % (v(vA2), v(vLane)))
    a("v_lshl_add_u32 %s, %s, 3, %s" % (v(vA1), v(vA2), v(vA1)))
    a("v_lshl_add_u32 %s, %s, 5, %s" % (v(vA1), v(g1), v(vA1)))
    a("s_movk_i32 %s, 1040" % s(sT0))
    a("v_mul_lo_u32 %s, %s, %s" % (v(vA2), v(l16), s(sT0)))
    a("v_lshl_add_u32 %s, %s, 4, %s" % (v(vA2), v(hl), v(vA2)))
    a("v_lshl_add_u32 %s, %s, 8, %s" % (v(vKlo), v(g1), v(vA2)))
    a("s_lshl_b32 %s, %s, 9" % (s(sT1), s(sKH)))
    a("v_add_u32 %s, %s, %s" % (v(vKlo), s(sT1), v(vKlo)))
    a("v_subrev_u32 %s, %s, %s" % (v(vKhi), s(sKH128), v(vKlo)))
    a("v_add_u32 %s, %s, %s" % (v(vKlo), s(sKH128), v(vKlo)))
    a("v_lshl_add_u32 %s, %s, 8, %s" % (v(vXr), v(g1), v(vA2)))
    a("s_and_b32 %s, %s, 1" % (s(sT0), s(sQG)))
    a("s_lshr_b32 %s, %s, 1" % (s(sT2), s(sQG)))
    a("s_lshl_b32 %s, %s, 2" % (s(sT2), s(sT2)))
    a("s_add_u32 %s, %s, %s" % (s(sT0), s(sT0), s(sT2)))
    a("s_lshl_b32 %s, %s, 7" % (s(sT0), s(sT0)))
    a("v_add_u32 %s, %s, %s" % (v(vXr), s(sT0), v(vXr)))
    a("s_movk_i32 %s, 1088" % s(sT0))
    a("v_lshl_add_u32 %s, %s, 2, %s" % (v(vA3), v(hl), v(r_)))
    a("v_mul_lo_u32 %s, %s, %s" % (v(vA3), v(vA3), s(sT0)))
    a("v_add_u32 %s, %s, %s" % (v(vA3), v(vA3), v(vA1)))
    a("s_add_u32 %s, %s, %d" % (s(sT1), s(sT1), KT))
    a("v_add_u32 %s, %s, %s" % (v(vVlo), s(sT1), v(vA3)))
    a("v_subrev_u32 %s, %s, %s" % (v(vVhi), s(sKH128), v(vVlo)))
    a("v_add_u32 %s, %s, %s" % (v(vVlo), s(sKH128), v(vVlo)))
    a("v_lshl_add_u32 %s, %s, 3, %s" % (v(vA3), v(hl), v(r_)))
    a("v_mul_lo_u32 %s, %s, %s" % (v(vA3), v(vA3), s(sT0)))
    a("v_add_u32 %s, %s, %s" % (v(vA3), v(vA3), v(vA1)))
    a("s_add_u32 %s, %s, %d" % (s(sT1), s(sKH128), KT))
    a("v_add_u32 %s, %s, %s" % (v(vWr), s(sT1), v(vA3)))
    a("v_lshrrev_b32 %s, 4, %s" % (v(vA2), v(vLane)))
    a("v_lshlrev_b32 %s, 4, %s" % (v(vA3), v(l16)))
    a("v_lshl_add_u32 %s, %s, 12, %s" % (v(vKV), v(vA2), v(vA3)))
    a("s_lshl_b32 %s, %s, 9" % (s(sT0), s(sW)))
    a("v_add_u32 %s, %s, %s" % (v(vKV), s(sT0), v(vKV)))
    a("v_lshl_add_u32 %s, %s, 17, %s" % (v(vWo), v(vA2), v(vA3)))
    a("s_lshl_b32 %s, %s, 14" % (s(sT0), s(sW)))
    a("v_add_u32 %s, %s, %s" % (v(vWo), s(sT0), v(vWo)))
    a("v_bfe_u32 %s, %s, 3, 1" % (v(vA2), v(vLane)))
    a("v_lshlrev_b32 %s, 16, %s" % (v(vXo), v(vA2)))
    a("v_bfe_u32 %s, %s, 4, 1" % (v(vA2), v(vLane)))
    a("v_lshl_add_u32 %s, %s, 15, %s" % (v(vXo), v(vA2), v(vXo)))
    a("v_lshl_add_u32 %s, %s, 17, %s" % (v(vXo), v(hl), v(vXo)))
    a("v_and_b32 %s, 7, %s" % (v(vA2), v(vLane)))
    a("v_lshl_add_u32 %s, %s, 4, %s" % (v(vXo), v(vA2), v(vXo)))
    a("s_lshl_b32 %s, %s, 12" % (s(sT0), s(sW)))
    a("v_add_u32 %s, %s, %s" % (v(vXo), s(sT0), v(vXo)))
    a("s_mul_i32 %s, %s, 2080" % (s(sMA), s(sW)))
    a("s_mul_i32 %s, %s, 2176" % (s(sMB), s(sW)))
    a("s_add_u32 %s, %s, %d" % (s(sMB), s(sMB), KT))
    a("s_waitcnt lgkmcnt(0)")
    a("s_lshl_b32 %s, %s, 5" % (s(sT0), s(sB)))
    a("s_add_u32 %s, %s, %s" % (s(sT0), s(sT0), s(sH)))
    a("s_lshr_b32 %s, %s, 13" % (s(sT1), s(sT0)))
    a("s_lshl_b32 %s, %s, 19" % (s(sT0), s(sT0)))
    for (r, p) in ((rK, sKp), (rV, sVp)):
        a("s_add_u32 %s, %s, %s" % (s(r), s(p), s(sT0)))
        a("s_addc_u32 %s, %s, %s" % (s(r + 1), s(p + 1), s(sT1)))
        a("s_mov_b32 %s, 0x80000" % s(r + 2))
        a("s_mov_b32 %s, 0x20000" % s(r + 3))
    a("s_lshl_b32 %s, %s, 18" % (s(sT0), s(sB)))
    a("s_add_u32 %s, %s, %s" % (s(rX), s(sX), s(sT0)))
    a("s_addc_u32 %s, %s, 0" % (s(rX + 1), s(sX + 1)))
    a("s_mov_b32 %s, 0x40000" % s(rX + 2))
    a("s_mov_b32 %s, 0x20000" % s(rX + 3))
    a("s_lshl_b32 %s, %s, 8" % (s(sT0), s(sH)))
    a("s_add_u32 %s, %s, %s" % (s(rW), s(sWQ), s(sT0)))
    a("s_addc_u32 %s, %s, 0" % (s(rW + 1), s(sWQ + 1)))
    a("s_sub_u32 %s, 0x800000, %s" % (s(rW + 2), s(sT0)))
    a("s_mov_b32 %s, 0x20000" % s(rW + 3))
    a("s_mov_b32 %s, %s" % (s(rO), s(sWS)))
    a("s_mov_b32 %s, %s" % (s(rO + 1), s(sWS + 1)))
    a("s_mov_b32 %s, 0x800000" % s(rO + 2))
    a("s_mov_b32 %s, 0x20000" % s(rO + 3))
    a("s_mov_b32 %s, 0" % s(sXo))
    a("s_mov_b32 %s, 0" % s(sWo))
    if rot:
        a("s_mul_i32 %s, s2, 5" % s(sKo))
        a("s_and_b32 %s, %s, 31" % (s(sKo), s(sKo)))
        a("s_lshl_b32 %s, %s, 14" % (s(sKo), s(sKo)))
    else:
        a("s_mov_b32 %s, 0" % s(sKo))
    a("s_mov_b32 %s, 0" % s(sIslot))
    a("s_mov_b32 %s, 0" % s(sCslot))

    def adv_slot(sr):
        a("s_add_u32 %s, %s, %d" % (s(sr), s(sr), SLOT))
        a("s_cmp_ge_u32 %s, %d" % (s(sr), SLOT * NSLOT))
        a("s_cselect_b32 %s, 0, %s" % (s(sr), s(sr)))

    def issue_q():
        a("s_add_u32 m0, %s, %s" % (s(sIslot), s(sMA)))
        a("s_add_u32 %s, %s, 2048" % (s(sT0), s(sXo)))
        a("buffer_load_dwordx4 %s, %s, %s offen lds" % (v(vXo), s(rX, 4), s(sXo)))
        a("s_add_u32 m0, m0, 1040")
        a("s_add_u32 %s, %s, 8192" % (s(sT1), s(sWo)))
        a("buffer_load_dwordx4 %s, %s, %s offen lds" % (v(vXo), s(rX, 4), s(sT0)))
        a("s_add_u32 m0, %s, %s" % (s(sIslot), s(sMB)))
        a("s_add_u32 %s, %s, 128" % (s(sXo), s(sXo)))
        a("buffer_load_dwordx4 %s, %s, %s offen lds" % (v(vWo), s(rW, 4), s(sWo)))
        a("s_add_u32 m0, m0, 1088")
        a("s_add_u32 %s, %s, 0x80000" % (s(sWo), s(sWo)))
        a("buffer_load_dwordx4 %s, %s, %s offen lds" % (v(vWo), s(rW, 4), s(sT1)))
        adv_slot(sIslot)

    def issue_kv():
        a("s_add_u32 m0, %s, %s" % (s(sIslot), s(sMA)))
        a("s_add_u32 %s, %s, 256" % (s(sT0), s(sKo)))
        a("buffer_load_dwordx4 %s, %s, %s offen nt lds" % (v(vKV), s(rK, 4), s(sKo)))
        a("s_add_u32 m0, m0, 1040")
        a("s_nop 0")
        a("buffer_load_dwordx4 %s, %s, %s offen nt lds" % (v(vKV), s(rK, 4), s(sT0)))
        a("s_add_u32 m0, %s, %s" % (s(sIslot), s(sMB)))
        a("s_nop 0")
        a("buffer_load_dwordx4 %s, %s, %s offen nt lds" % (v(vKV), s(rV, 4), s(sKo)))
        a("s_add_u32 m0, m0, 1088")
        a("s_add_u32 %s, %s, 16384" % (s(sKo), s(sKo)))
        a("buffer_load_dwordx4 %s, %s, %s offen nt lds" % (v(vKV), s(rV, 4), s(sT0)))
        a("s_and_b32 %s, %s, 0x7ffff" % (s(sKo), s(sKo)))
        adv_slot(sIslot)

    for i in range(NSLOT - 1):
        issue_q()
    vQa = vS
    for i in range(32):
        a("v_mov_b32 %s, 0" % v(vQa + i))
    a("s_mov_b32 %s, 0" % s(sIt))
    a.label("LA_q")
    a("s_waitcnt vmcnt(8)")
    a("s_barrier")
    a("s_cmp_ge_u32 %s, %d" % (s(sIt), 16 - (NSLOT - 1)))
    a("s_cbranch_scc1 LA_q_kv")
    issue_q()
    a("s_branch LA_q_go")
    a.label("LA_q_kv")
    issue_kv()
    a.label("LA_q_go")
    a("v_add_u32 %s, %s, %s" % (v(vA0), s(sCslot), v(vXr)))
    a("v_add_u32 %s, %s, %s" % (v(vA1), s(sCslot), v(vWr)))
    def qreads(ks):
        a("ds_read_b128 %s, %s offset:%d" % (v(vKf + 4 * ks, 4), v(vA0), ks * 32))
        for ai in range(2):
            for j in range(2):
                a("ds_read_b64_tr_b16 %s, %s offset:%d" % (v(vVf + (ks * 2 + ai) * 4 + 2 * j, 2), v(vA1), j * 4352 + ks * 256 + ai * 64))
    def qmfma(ks):
        for ai in range(2):
            a("v_mfma_f32_32x32x16_bf16 %s, %s, %s, %s" % (v(vQa + 16 * ai, 16), v(vVf + (ks * 2 + ai) * 4, 4), v(vKf + 4 * ks, 4), v(vQa + 16 * ai, 16)))
    qreads(0); qreads(1); qreads(2)
    a("s_waitcnt lgkmcnt(10)")
    qmfma(0)
    qreads(3)
    a("s_waitcnt lgkmcnt(10)")
    qmfma(1)
    a("s_waitcnt lgkmcnt(5)")
    qmfma(2)
    a("s_waitcnt lgkmcnt(0)")
    qmfma(3)
    adv_slot(sCslot)
    a("s_add_u32 %s, %s, 1" % (s(sIt), s(sIt)))
    a("s_cmp_lt_u32 %s, 16" % s(sIt))
    a("s_cbranch_scc1 LA_q")
    a("s_mov_b32 %s, 0x%08x" % (s(sC), f2u(CSCALE)))
    a("s_nop 7")
    a("s_nop 3")
    for i in range(32):
        a("v_mul_f32 %s, %s, %s" % (v(vQa + i), s(sC), v(vQa + i)))
    for i in range(16):
        a("v_cvt_pk_bf16_f32 %s, %s, %s" % (v(vQ + i), v(vQa + 2 * i), v(vQa + 2 * i + 1)))
    a("s_lshl_b32 %s, %s, 12" % (s(sT0), s(sW)))
    a("s_add_u32 %s, %s, %s" % (s(sT0), s(sT0), s(sIslot)))
    a("v_lshlrev_b32 %s, 4, %s" % (v(vA0), v(vLane)))
    a("v_add_u32 %s, %s, %s" % (v(vA1), s(sT0), v(vA0)))
    a("s_xor_b32 %s, %s, 4" % (s(sT1), s(sW)))
    a("s_lshl_b32 %s, %s, 12" % (s(sT1), s(sT1)))
    a("s_add_u32 %s, %s, %s" % (s(sT1), s(sT1), s(sIslot)))
    a("v_add_u32 %s, %s, %s" % (v(vA2), s(sT1), v(vA0)))
    a("s_barrier")
    for f in range(4):
        a("ds_write_b128 %s, %s offset:%d" % (v(vA1), v(vQ + 4 * f, 4), f * 1024))
    a("s_waitcnt lgkmcnt(0)")
    a("s_barrier")
    for f in range(4):
        a("ds_read_b128 %s, %s offset:%d" % (v(vQ + 16 + 4 * f, 4), v(vA2), f * 1024))
    for i in range(16):
        a("v_mov_b32 %s, 0" % v(vNM + i))
    for i in range(64):
        a("v_mov_b32 %s, 0" % v(vO + i))
    a("v_mov_b32 %s, 0" % v(vL))
    a("s_mov_b32 %s, 0x%08x" % (s(sThr), f2u(-1.0)))
    a("s_mov_b32 %s, 0xff800000" % s(sDmin))
    a("s_mov_b32 %s, 0" % s(sIt))
    a("s_waitcnt lgkmcnt(0)")
    a.label("LA_t")
    a("s_waitcnt vmcnt(8)")
    a("s_barrier")
    a("s_cmp_ge_u32 %s, %d" % (s(sIt), 32 - (NSLOT - 1)))
    a("s_cselect_b32 %s, 0, 0x80000" % s(rK + 2))
    a("s_cselect_b32 %s, 0, 0x80000" % s(rV + 2))
    a("v_add_u32 %s, %s, %s" % (v(vA0), s(sCslot), v(vKlo)))
    a("v_add_u32 %s, %s, %s" % (v(vA1), s(sCslot), v(vKhi)))
    for f in range(8):
        a("ds_read_b128 %s, %s offset:%d" % (v(vKf + 4 * f, 4), v(vA0 if f < 4 else vA1), f * 32))
    issue_kv()
    a("v_add_u32 %s, %s, %s" % (v(vA2), s(sCslot), v(vVlo)))
    a("v_add_u32 %s, %s, %s" % (v(vA3), s(sCslot), v(vVhi)))
    vreads = []
    for kk in range(2):
        for ai in range(4):
            for j in range(2):
                vreads.append("ds_read_b64_tr_b16 %s, %s offset:%d" % (v(vVf + (kk * 4 + ai) * 4 + 2 * j, 2), v(vA2 if ai < 2 else vA3), j * 8704 + kk * 256 + ai * 64))
    for f in range(8):
        a("s_waitcnt lgkmcnt(%d)" % min(15, 7 + f))
        a("v_mfma_f32_32x32x16_bf16 %s, %s, %s, %s" % (v(vS, 16), v(vKf + 4 * f, 4), v(vQ + 4 * f, 4), v(vNM, 16) if f == 0 else v(vS, 16)))
        a(vreads[2 * f]); a(vreads[2 * f + 1])
    adv_slot(sCslot)
    a("s_nop 7")
    def exps_and_sum():
        for j in range(16):
            a("v_exp_f32 %s, %s" % (v(vP + j), v(vS + j)))
            if j == 2: a("v_add_f32 %s, %s, %s" % (v(vTs), v(vP + 0), v(vP + 1)))
            if j == 4: a("v_add_f32 %s, %s, %s" % (v(vTs2), v(vP + 2), v(vP + 3)))
            if j >= 6 and j % 2 == 0:
                a("v_add_f32 %s, %s, %s" % (v(vTs), v(vP + j - 2), v(vTs)))
                a("v_add_f32 %s, %s, %s" % (v(vTs2), v(vP + j - 1), v(vTs2)))
        a("v_add_f32 %s, %s, %s" % (v(vTs), v(vP + 14), v(vTs)))
        a("s_nop 0")
        a("v_add_f32 %s, %s, %s" % (v(vTs2), v(vP + 15), v(vTs2)))
        a("v_add_f32 %s, %s, %s" % (v(vTs), v(vTs2), v(vTs)))
    exps_and_sum()
    a("v_cmp_lt_f32 vcc, %s, %s" % (s(sThr), v(vTs)))
    a("s_cbranch_vccnz LA_rare")
    a.label("LA_back")
    for j in range(8):
        a("v_cvt_pk_bf16_f32 %s, %s, %s" % (v(vPb + j), v(vP + 2 * j), v(vP + 2 * j + 1)))
    a("v_add_f32 %s, %s, %s" % (v(vL), v(vTs), v(vL)))
    a("s_add_u32 %s, %s, 1" % (s(sIt), s(sIt)))
    a("s_waitcnt lgkmcnt(0)")
    for kk in range(2):
        for ai in range(4):
            a("v_mfma_f32_32x32x16_bf16 %s, %s, %s, %s" % (v(vO + 16 * ai, 16), v(vVf + (kk * 4 + ai) * 4, 4), v(vPb + 4 * kk, 4), v(vO + 16 * ai, 16)))
    a("s_cmp_lt_u32 %s, 32" % s(sIt))
    a("s_cbranch_scc1 LA_t")
    a("v_mov_b32 %s, %s" % (v(vTs), v(vL)))
    a("s_nop 1")
    a("v_permlane32_swap_b32 %s, %s" % (v(vL), v(vTs)))
    a("s_nop 0")
    a("v_add_f32 %s, %s, %s" % (v(vNM + 1), v(vL), v(vTs)))
    a("s_mul_i32 %s, %s, 8704" % (s(sT0), s(sW)))
    a("s_xor_b32 %s, %s, 4" % (s(sT1), s(sW)))
    a("s_mul_i32 %s, %s, 8704" % (s(sT1), s(sT1)))
    a("v_lshlrev_b32 %s, 4, %s" % (v(vA0), v(vLane)))
    a("v_lshlrev_b32 %s, 3, %s" % (v(vA1), v(vLane)))
    a("v_add_u32 %s, %s, %s" % (v(vA2), s(sT0), v(vA0)))
    a("v_add_u32 %s, %s, %s" % (v(vA3), s(sT0), v(vA1)))
    a("v_add_u32 %s, %s, %s" % (v(vA0), s(sT1), v(vA0)))
    a("v_add_u32 %s, %s, %s" % (v(vA1), s(sT1), v(vA1)))
    a("s_waitcnt vmcnt(0)")
    a("s_barrier")
    a("ds_write_b64 %s, %s offset:8192" % (v(vA3), v(vNM, 2)))
    for i in range(8):
        a("ds_write_b128 %s, %s offset:%d" % (v(vA2), v(vO + 32 + 4 * i, 4), i * 1024))
    a("s_waitcnt lgkmcnt(0)")
    a("s_barrier")
    a("ds_read_b64 %s, %s offset:8192" % (v(vNM + 2, 2), v(vA1)))
    for i in range(8):
        a("ds_read_b128 %s, %s offset:%d" % (v(vO + 32 + 4 * i, 4), v(vA0), i * 1024))
    a("s_lshl_b32 %s, %s, 2" % (s(sT0), s(sB)))
    a("s_add_u32 %s, %s, %s" % (s(sT0), s(sT0), s(sQG)))
    a("s_lshl_b32 %s, %s, 5" % (s(sT0), s(sT0)))
    a("s_add_u32 %s, %s, %s" % (s(sT0), s(sT0), s(sH)))
    a("s_lshl_b32 %s, %s, 13" % (s(sT0), s(sT0)))
    a("s_lshl_b32 %s, %s, 12" % (s(sT1), s(sKH)))
    a("s_add_u32 %s, %s, %s" % (s(sT0), s(sT0), s(sT1)))
    a("v_lshlrev_b32 %s, 4, %s" % (v(vA2), v(vLane)))
    a("s_waitcnt lgkmcnt(8)")
    n0, l0, n1, l1 = vNM, vNM + 1, vNM + 2, vNM + 3
    mf, s0_, s1_, lf = vNM + 4, vNM + 5, vNM + 6, vNM + 7
    a("v_min_f32 %s, %s, %s" % (v(mf), v(n0), v(n1)))
    a("v_sub_f32 %s, %s, %s" % (v(s0_), v(mf), v(n0)))
    a("v_sub_f32 %s, %s, %s" % (v(s1_), v(mf), v(n1)))
    a("v_exp_f32 %s, %s" % (v(s0_), v(s0_)))
    a("v_exp_f32 %s, %s" % (v(s1_), v(s1_)))
    a("s_nop 0")
    a("v_mul_f32 %s, %s, %s" % (v(lf), v(l0), v(s0_)))
    a("v_fma_f32 %s, %s, %s, %s" % (v(lf), v(l1), v(s1_), v(lf)))
    a("v_rcp_f32 %s, %s" % (v(lf), v(lf)))
    a("s_nop 0")
    a("v_mul_f32 %s, %s, %s" % (v(s0_), v(s0_), v(lf)))
    a("v_mul_f32 %s, %s, %s" % (v(s1_), v(s1_), v(lf)))
    for i in range(32):
        a("v_mul_f32 %s, %s, %s" % (v(vO + i), v(s0_), v(vO + i)))
    a("s_waitcnt lgkmcnt(0)")
    for i in range(32):
        a("v_fma_f32 %s, %s, %s, %s" % (v(vO + i), v(s1_), v(vO + 32 + i), v(vO + i)))
    for i in range(16):
        a("v_cvt_pk_bf16_f32 %s, %s, %s" % (v(vP + i), v(vO + 2 * i), v(vO + 2 * i + 1)))
    for f in range(4):
        a("buffer_store_dwordx4 %s, %s, %s, %s offen offset:%d" % (v(vP + 4 * f, 4), v(vA2), s(rO, 4), s(sT0), f * 1024))
    a.label("LA_end")
    a("s_endpgm")
    a.label("LA_rare")
    t, t2, d, al = vTs, vTs2, vT0, vT1
    a("v_max3_f32 %s, %s, %s, %s" % (v(t), v(vS), v(vS + 1), v(vS + 2)))
    for j in range(3, 15, 2):
        a("v_max3_f32 %s, %s, %s, %s" % (v(t), v(t), v(vS + j), v(vS + j + 1)))
    a("v_max_f32 %s, %s, %s" % (v(t), v(t), v(vS + 15)))
    a("v_mov_b32 %s, %s" % (v(t2), v(t)))
    a("s_nop 1")
    a("v_permlane32_swap_b32 %s, %s" % (v(t), v(t2)))
    a("s_nop 0")
    a("v_max_f32 %s, %s, %s" % (v(t), v(t), v(t2)))
    a("v_max_f32 %s, %s, %s" % (v(d), s(sDmin), v(t)))
    a("v_max_f32 %s, 0, %s" % (v(al), v(d)))
    a("v_sub_f32 %s, 0, %s" % (v(al), v(al)))
    a("v_exp_f32 %s, %s" % (v(al), v(al)))
    for j in range(16):
        a("v_sub_f32 %s, %s, %s" % (v(vNM + j), v(vNM + j), v(d)))
        a("v_sub_f32 %s, %s, %s" % (v(vS + j), v(vS + j), v(d)))
    for i in range(64):
        a("v_mul_f32 %s, %s, %s" % (v(vO + i), v(al), v(vO + i)))
    a("v_mul_f32 %s, %s, %s" % (v(vL), v(al), v(vL)))
    exps_and_sum()
    a("s_mov_b32 %s, 0x%08x" % (s(sThr), f2u(THR)))
    a("s_mov_b32 %s, 0" % s(sDmin))
    a("s_branch LA_back")
    return NV, 64

WRING = 8 * 2176
def gen_oproj(a, name):
    kernel_header(a, name)
    sWO, sOUT, sDBG, sWS = 12, 14, 16, 18
    rW, rO, rOut = 20, 24, 28
    sW, sQT, sNT, sT0, sT1, sT2 = 32, 33, 34, 35, 36, 37
    sM = 38
    sOo0, sOo1, sWo = 39, 40, 41
    vLane, vT0, vT1, vT2, vT3 = 1, 2, 3, 4, 5
    vOo, vWo, vWr = 6, 7, 8
    vAf = 12
    vB = 28
    vAcc = 92
    NV = 156
    a("s_cmp_ge_u32 s2, 256")
    a("s_cbranch_scc1 LB_end")
    a("s_load_dwordx8 s[12:19], s[0:1], 32")
    a("v_lshrrev_b32 %s, 6, v0" % v(vT0))
    a("v_and_b32 %s, 63, v0" % v(vLane))
    a("v_readfirstlane_b32 %s, %s" % (s(sW), v(vT0)))
    a("s_bfe_u32 %s, s2, 0x20001" % s(sT0))
    a("s_lshl_b32 %s, %s, 2" % (s(sT0), s(sT0)))
    a("s_lshr_b32 %s, s2, 6" % s(sT1))
    a("s_add_u32 %s, %s, %s" % (s(sQT), s(sT0), s(sT1)))
    a("s_and_b32 %s, s2, 1" % s(sT0))
    a("s_lshl_b32 %s, %s, 3" % (s(sT0), s(sT0)))
    a("s_bfe_u32 %s, s2, 0x30003" % s(sT1))
    a("s_add_u32 %s, %s, %s" % (s(sNT), s(sT0), s(sT1)))
    a("v_lshlrev_b32 %s, 4, %s" % (v(vOo), v(vLane)))
    a("v_lshrrev_b32 %s, 3, %s" % (v(vT0), v(vLane)))
    a("v_and_b32 %s, 7, %s" % (v(vT1), v(vLane)))
    a("v_lshlrev_b32 %s, 4, %s" % (v(vT1), v(vT1)))
    a("v_lshl_add_u32 %s, %s, 12, %s" % (v(vWo), v(vT0), v(vT1)))
    a("v_and_b32 %s, 1, %s" % (v(vT0), v(vLane)))
    a("v_lshlrev_b32 %s, 4, %s" % (v(vT0), v(vT0)))
    a("v_bfe_u32 %s, %s, 1, 1" % (v(vT1), v(vLane)))
    a("v_lshl_add_u32 %s, %s, 3, %s" % (v(vT0), v(vT1), v(vT0)))
    a("v_bfe_u32 %s, %s, 4, 1" % (v(vT1), v(vLane)))
    a("v_lshl_add_u32 %s, %s, 5, %s" % (v(vT0), v(vT1), v(vT0)))
    a("v_bfe_u32 %s, %s, 3, 1" % (v(vT1), v(vLane)))
    a("v_lshl_add_u32 %s, %s, 7, %s" % (v(vT0), v(vT1), v(vT0)))
    a("v_lshrrev_b32 %s, 5, %s" % (v(vT1), v(vLane)))
    a("v_lshl_add_u32 %s, %s, 9, %s" % (v(vT0), v(vT1), v(vT0)))
    a("v_bfe_u32 %s, %s, 2, 1" % (v(vT1), v(vLane)))
    a("v_mul_u32_u24 %s, 1088, %s" % (v(vT1), v(vT1)))
    a("v_add_u32 %s, %s, %s" % (v(vT0), v(vT0), v(vT1)))
    a("s_mul_i32 %s, %s, %d" % (s(sM), s(sW), WRING))
    a("v_add_u32 %s, %s, %s" % (v(vWr), s(sM), v(vT0)))
    a("s_waitcnt lgkmcnt(0)")
    a("s_mov_b32 %s, %s" % (s(rW), s(sWO)))
    a("s_mov_b32 %s, %s" % (s(rW + 1), s(sWO + 1)))
    a("s_mov_b32 %s, 0x800000" % s(rW + 2))
    a("s_mov_b32 %s, 0x20000" % s(rW + 3))
    a("s_mov_b32 %s, %s" % (s(rO), s(sWS)))
    a("s_mov_b32 %s, %s" % (s(rO + 1), s(sWS + 1)))
    a("s_mov_b32 %s, 0x800000" % s(rO + 2))
    a("s_mov_b32 %s, 0x20000" % s(rO + 3))
    a("s_mov_b32 %s, %s" % (s(rOut), s(sOUT)))
    a("s_mov_b32 %s, %s" % (s(rOut + 1), s(sOUT + 1)))
    a("s_mov_b32 %s, 0x200000" % s(rOut + 2))
    a("s_mov_b32 %s, 0x20000" % s(rOut + 3))
    a("s_lshl_b32 %s, %s, 19" % (s(sOo0), s(sQT)))
    a("s_lshl_b32 %s, %s, 15" % (s(sT0), s(sW)))
    a("s_add_u32 %s, %s, %s" % (s(sOo0), s(sOo0), s(sT0)))
    a("s_add_u32 %s, %s, 0x40000" % (s(sOo1), s(sOo0)))
    a("s_lshl_b32 %s, %s, 20" % (s(sWo), s(sW)))
    a("s_lshl_b32 %s, %s, 7" % (s(sT0), s(sNT)))
    a("s_add_u32 %s, %s, %s" % (s(sWo), s(sWo), s(sT0)))

    def issue(ks):
        sl = ks % 8
        a("s_add_u32 m0, %s, %d" % (s(sM), sl * 2176))
        a("s_add_u32 %s, %s, 2048" % (s(sT0), s(sWo)))
        a("buffer_load_dwordx4 %s, %s, %s offen lds" % (v(vWo), s(rW, 4), s(sWo)))
        a("s_add_u32 m0, m0, 1088")
        a("s_add_u32 %s, %s, 32768" % (s(sWo), s(sWo)))
        a("buffer_load_dwordx4 %s, %s, %s offen lds" % (v(vWo), s(rW, 4), s(sT0)))
        off = (ks % 4) * 1024
        a("buffer_load_dwordx4 %s, %s, %s, %s offen offset:%d" % (v(vB + sl * 8, 4), v(vOo), s(rO, 4), s(sOo0), off))
        a("buffer_load_dwordx4 %s, %s, %s, %s offen offset:%d" % (v(vB + sl * 8 + 4, 4), v(vOo), s(rO, 4), s(sOo1), off))
        if ks % 4 == 3:
            a("s_add_u32 %s, %s, 4096" % (s(sOo0), s(sOo0)))
            a("s_add_u32 %s, %s, 4096" % (s(sOo1), s(sOo1)))
    for ks in range(8):
        issue(ks)
    for i in range(64):
        a("v_mov_b32 %s, 0" % v(vAcc + i))
    a("s_mov_b32 %s, 0" % s(sT2))
    def body(do_issue):
        for sl in range(8):
            a("s_waitcnt vmcnt(%d)" % (28 if do_issue else (7 - sl) * 4))
            for nb in range(2):
                for j in range(2):
                    a("ds_read_b64_tr_b16 %s, %s offset:%d" % (v(vAf + nb * 4 + 2 * j, 2), v(vWr), sl * 2176 + j * 256 + nb * 64))
            a("s_waitcnt lgkmcnt(0)")
            for u in range(2):
                for nb in range(2):
                    acc = vAcc + (u * 2 + nb) * 16
                    a("v_mfma_f32_32x32x16_bf16 %s, %s, %s, %s" % (v(acc, 16), v(vAf + nb * 4, 4), v(vB + sl * 8 + u * 4, 4), v(acc, 16)))
            if do_issue:
                issue(sl)
    a.label("LB_loop")
    body(True)
    a("s_add_u32 %s, %s, 1" % (s(sT2), s(sT2)))
    a("s_cmp_lt_u32 %s, 3" % s(sT2))
    a("s_cbranch_scc1 LB_loop")
    body(False)
    a("v_and_b32 %s, 31, %s" % (v(vT0), v(vLane)))
    a("v_mul_u32_u24 %s, 272, %s" % (v(vT0), v(vT0)))
    a("v_lshrrev_b32 %s, 5, %s" % (v(vT1), v(vLane)))
    a("v_lshl_add_u32 %s, %s, 5, %s" % (v(vT0), v(vT1), v(vT0)))
    a("v_add_u32 %s, %s, %s" % (v(vT0), s(sM), v(vT0)))
    a("v_lshrrev_b32 %s, 3, %s" % (v(vT1), v(vLane)))
    a("s_lshl_b32 %s, %s, 3" % (s(sT0), s(sW)))
    a("v_add_u32 %s, %s, %s" % (v(vT1), s(sT0), v(vT1)))
    a("v_mul_u32_u24 %s, 272, %s" % (v(vT2), v(vT1)))
    a("v_and_b32 %s, 7, %s" % (v(vT3), v(vLane)))
    a("v_lshl_add_u32 %s, %s, 5, %s" % (v(vT2), v(vT3), v(vT2)))
    a("v_lshlrev_b32 %s, 11, %s" % (v(vT1), v(vT1)))
    a("v_lshl_add_u32 %s, %s, 4, %s" % (v(vT1), v(vT3), v(vT1)))
    a("s_lshl_b32 %s, %s, 17" % (s(sT0), s(sQT)))
    a("s_lshl_b32 %s, %s, 7" % (s(sT1), s(sNT)))
    a("s_add_u32 %s, %s, %s" % (s(sT0), s(sT0), s(sT1)))
    a("s_nop 4")
    for u in range(2):
        for nb in range(2):
            for g in range(4):
                acc = vAcc + (u * 2 + nb) * 16 + 4 * g
                off = u * 32 * 272 + (32 * nb + 16 * (g // 2) + 4 * (g % 2)) * 4
                a("ds_write_b128 %s, %s offset:%d" % (v(vT0), v(acc, 4), off))
    a("s_waitcnt lgkmcnt(0)")
    a("s_barrier")
    a("v_add_u32 %s, %d, %s" % (v(vT3), 4 * WRING, v(vT2)))
    for p in range(8):
        base = vT2 if p < 4 else vT3
        for hh in range(2):
            a("ds_read_b128 %s, %s offset:%d" % (v(vB + p * 8 + hh * 4, 4), v(base), (p % 4) * WRING + hh * 16))
    for p in range(1, 8):
        a("s_waitcnt lgkmcnt(%d)" % (14 - 2 * p))
        for i in range(8):
            a("v_add_f32 %s, %s, %s" % (v(vB + i), v(vB + p * 8 + i), v(vB + i)))
    for i in range(4):
        a("v_cvt_pk_bf16_f32 %s, %s, %s" % (v(vAf + i), v(vB + 2 * i), v(vB + 2 * i + 1)))
    a("buffer_store_dwordx4 %s, %s, %s, %s offen" % (v(vAf, 4), v(vT1), s(rOut, 4), s(sT0)))
    a.label("LB_end")
    a("s_endpgm")
    return NV, 48

def main(out="k1.s", rot=True):
    a = Asm()
    NA = "standalone__mha_block_cached__near_ridge_kernel"
    NB = "oproj_kernel"
    a.raw("; @launch kernel=%s grid=(256,1,1) block=(512,1,1) lds=%d" % (NA, SLOT * NSLOT))
    a.raw("; @launch kernel=%s grid=(256,1,1) block=(512,1,1) lds=%d" % (NB, WRING * 8))
    a.raw('.amdgcn_target "amdgcn-amd-amdhsa--gfx950"')
    a.raw(".text")
    nva, nsa = gen_attn(a, NA, rot)
    nvb, nsb = gen_oproj(a, NB)
    a.raw('.section .rodata,"a"')
    kernel_desc(a, NA, nva, nsa)
    kernel_desc(a, NB, nvb, nsb)
    open(out, "w").write(a.text())

if __name__ == "__main__":
    main()
```

```python
import sys, struct
from gen1 import Asm, v, s, f2u, kernel_header, kernel_desc

SLOT = 32768
BAND = 16384
CSCALE = 1.4426950408889634 / (128 ** 0.5)
THR = 4096.0
FLAG_OFF = 0x800000
FLAG_STRIDE = 4352
SPIN_MAX = 1 << 20

class Cnt:
    def __init__(self, a, name, mx):
        self.a, self.name, self.mx, self.ops = a, name, mx, []
    def issue(self, tag): self.ops.append(tag)
    def wait(self, tag):
        idx = [i for i, t in enumerate(self.ops) if t == tag]
        if not idx: return
        n = len(self.ops) - 1 - idx[-1]
        self.a("s_waitcnt %s(%d)" % (self.name, min(n, self.mx)))
        self.ops = self.ops[idx[-1] + 1:]
    def drain(self, emit=True):
        if emit: self.a("s_waitcnt %s(0)" % self.name)
        self.ops = []

def gen(a, name, rot=True, qrot=True, ts=0, early=0, tmap="4x8", F=16, D=6, orot=True, wo_it=27, notail=False):
    kernel_header(a, name)
    sX, sKp, sVp, sWQ = 4, 6, 8, 10
    sWO, sOUT, sDBG, sWS = 12, 14, 16, 18
    rK, rV, rX, rW, rO = 20, 24, 28, 32, 36
    sW, sQG, sKH, sB, sH = 40, 41, 42, 43, 44
    sT0, sT1, sT2 = 45, 46, 47
    sIslot, sCslot, sIt = 48, 49, 50
    sXo, sWo, sKo = 51, 52, 53
    sM, sMq = 54, 55
    sThr, sDmin, sC = 56, 57, 58
    sE, sEo, sLim = 59, 60, 61
    sQT, sNT, sWB, sWK, sBand = 62, 63, 64, 65, 66
    sOB0, sOB1, sOK, sSpin = 67, 68, 69, 70
    rWO, rD, rOut = 72, 76, 80
    sTS = 84
    NS = 100
    vLane, vT0, vT1, vT2, vT3 = 1, 2, 3, 4, 5
    vWoff = 6
    vK0, vK1, vV = 7, 8, 9
    vX0, vX1, vW = 10, 11, 12
    vKb, vVb = 13, 14
    vL = 15
    vA0, vA1, vA2, vA3 = 16, 17, 18, 19
    vTs, vTs2 = 20, 21
    vQ = 24
    vNM = 56
    vS = 72
    vP = 88
    vPb = 104
    vKf = 112
    vVf = 144
    vO = 176
    NV = 256
    def emit(lst):
        for x in lst:
            if isinstance(x, list): emit(x)
            else: a(x)
    def stamp(i):
        if ts: a("s_memrealtime %s" % s(sTS + 2 * i, 2))

    a("s_cmp_ge_u32 s2, 256")
    a("s_cbranch_scc1 LA_end")
    stamp(0)
    a("s_load_dwordx8 s[4:11], s[0:1], 0")
    a("s_load_dwordx8 s[12:19], s[0:1], 32")
    a("v_lshrrev_b32 %s, 6, v0" % v(vT0))
    a("v_and_b32 %s, 63, v0" % v(vLane))
    a("v_readfirstlane_b32 %s, %s" % (s(sW), v(vT0)))
    a("s_and_b32 %s, s2, 7" % s(sT0))
    a("s_lshl_b32 %s, %s, 2" % (s(sT0), s(sT0)))
    a("s_bfe_u32 %s, s2, 0x20003" % s(sT1))
    a("s_add_u32 %s, %s, %s" % (s(sH), s(sT0), s(sT1)))
    a("s_lshr_b32 %s, s2, 5" % s(sB))
    a("s_and_b32 %s, %s, 3" % (s(sQG), s(sW)))
    a("s_lshr_b32 %s, %s, 2" % (s(sKH), s(sW)))
    l16, l4 = vT0, vT1
    a("v_and_b32 %s, 15, %s" % (v(l16), v(vLane)))
    a("v_lshrrev_b32 %s, 4, %s" % (v(l4), v(vLane)))
    a("v_lshlrev_b32 %s, 2, %s" % (v(vT2), v(l4)))
    a("v_xor_b32 %s, %s, %s" % (v(vT2), v(l16), v(vT2)))
    a("v_lshlrev_b32 %s, 4, %s" % (v(vT2), v(vT2)))
    if rot:
        a("s_mul_i32 %s, s2, 5" % s(sKo))
        a("s_and_b32 %s, %s, 31" % (s(sKo), s(sKo)))
        a("s_lshl_b32 %s, %s, 14" % (s(sKo), s(sKo)))
    else:
        a("s_mov_b32 %s, 0" % s(sKo))
    a("s_cmp_eq_u32 %s, 0" % s(sKH))
    a("s_cbranch_scc1 LA_Csetup")
    a("v_lshl_add_u32 %s, %s, 13, %s" % (v(vW), v(l4), v(vT2)))
    a("s_lshl_b32 %s, %s, 17" % (s(sT0), s(sQG)))
    a("v_add_u32 %s, %s, %s" % (v(vW), s(sT0), v(vW)))
    a("v_and_b32 %s, 7, %s" % (v(vT3), v(vLane)))
    a("v_xor_b32 %s, %s, %s" % (v(vT3), v(vT3), v(l4)))
    a("v_lshlrev_b32 %s, 4, %s" % (v(vT3), v(vT3)))
    a("v_lshrrev_b32 %s, 3, %s" % (v(vX0), v(vLane)))
    a("v_lshl_add_u32 %s, %s, 11, %s" % (v(vX0), v(vX0), v(vT3)))
    a("s_lshl_b32 %s, %s, 16" % (s(sT0), s(sQG)))
    a("v_add_u32 %s, %s, %s" % (v(vX0), s(sT0), v(vX0)))
    a("v_xor_b32 %s, 64, %s" % (v(vX1), v(vX0)))
    a("s_lshl_b32 %s, %s, 12" % (s(sMq), s(sQG)))
    if qrot:
        a("s_and_b32 %s, %s, 3" % (s(sT0), s(sH)))
        a("s_lshl_b32 %s, %s, 1" % (s(sT0), s(sT0)))
        a("s_add_u32 %s, %s, %s" % (s(sT0), s(sT0), s(sB)))
        a("s_lshl_b32 %s, %s, 1" % (s(sT0), s(sT0)))
        a("s_and_b32 %s, %s, 15" % (s(sT0), s(sT0)))
        a("s_lshl_b32 %s, %s, 7" % (s(sXo), s(sT0)))
        a("s_lshl_b32 %s, %s, 19" % (s(sWo), s(sT0)))
    else:
        a("s_mov_b32 %s, 0" % s(sXo))
        a("s_mov_b32 %s, 0" % s(sWo))
    a("s_mov_b32 %s, %d" % (s(sIslot), 2 * SLOT))
    a("s_waitcnt lgkmcnt(0)")
    a("s_lshl_b32 %s, %s, 18" % (s(sT0), s(sB)))
    a("s_add_u32 %s, %s, %s" % (s(rX), s(sX), s(sT0)))
    a("s_addc_u32 %s, %s, 0" % (s(rX + 1), s(sX + 1)))
    a("s_mov_b32 %s, 0x40000" % s(rX + 2))
    a("s_mov_b32 %s, 0x20000" % s(rX + 3))
    a("s_lshl_b32 %s, %s, 8" % (s(sT0), s(sH)))
    a("s_add_u32 %s, %s, %s" % (s(rW), s(sWQ), s(sT0)))
    a("s_addc_u32 %s, %s, 0" % (s(rW + 1), s(sWQ + 1)))
    a("s_sub_u32 %s, 0x800000, %s" % (s(rW + 2), s(sT0)))
    a("s_mov_b32 %s, 0x20000" % s(rW + 3))

    def issue_q():
        r = ["s_add_u32 m0, %s, %s" % (s(sIslot), s(sMq)),
             "s_mov_b32 %s, %s" % (s(sT0), s(sXo))]
        for p in range(4):
            r.append("buffer_load_dwordx4 %s, %s, %s offen lds" % (v(vX0 if p % 2 == 0 else vX1), s(rX, 4), s(sT0)))
            if p < 3:
                r.append("s_add_u32 m0, m0, 1024")
                r.append("s_add_u32 %s, %s, 16384" % (s(sT0), s(sT0)))
        r.append("s_add_u32 m0, m0, %d" % (16384 - 3072))
        r.append("s_mov_b32 %s, %s" % (s(sT0), s(sWo)))
        for p in range(4):
            r.append("buffer_load_dwordx4 %s, %s, %s offen lds" % (v(vW), s(rW, 4), s(sT0)))
            if p < 3:
                r.append("s_add_u32 m0, m0, 1024")
                r.append("s_add_u32 %s, %s, 32768" % (s(sT0), s(sT0)))
        r += ["s_add_u32 %s, %s, 128" % (s(sXo), s(sXo)),
              "s_add_u32 %s, %s, 0x80000" % (s(sWo), s(sWo)),
              "s_and_b32 %s, %s, 0x7ff" % (s(sXo), s(sXo)),
              "s_and_b32 %s, %s, 0x7fffff" % (s(sWo), s(sWo)),
              "s_add_u32 %s, %s, %d" % (s(sIslot), s(sIslot), SLOT),
              "s_cmp_ge_u32 %s, %d" % (s(sIslot), SLOT * 3),
              "s_cselect_b32 %s, 0, %s" % (s(sIslot), s(sIslot))]
        return r
    emit(issue_q())

    def common_setup():
        a("s_lshl_b32 %s, %s, 5" % (s(sT0), s(sB)))
        a("s_add_u32 %s, %s, %s" % (s(sT0), s(sT0), s(sH)))
        a("s_lshr_b32 %s, %s, 13" % (s(sT1), s(sT0)))
        a("s_lshl_b32 %s, %s, 19" % (s(sT0), s(sT0)))
        for (r, p) in ((rK, sKp), (rV, sVp)):
            a("s_add_u32 %s, %s, %s" % (s(r), s(p), s(sT0)))
            a("s_addc_u32 %s, %s, %s" % (s(r + 1), s(p + 1), s(sT1)))
            a("s_mov_b32 %s, 0x80000" % s(r + 2))
            a("s_mov_b32 %s, 0x20000" % s(r + 3))
        for (r, p, sz) in ((rO, sWS, "0x2000000" if ts else "0x900000"), (rWO, sWO, "0x800000"), (rD, sDBG, "256"), (rOut, sOUT, "0x200000")):
            a("s_mov_b32 %s, %s" % (s(r), s(p)))
            a("s_mov_b32 %s, %s" % (s(r + 1), s(p + 1)))
            a("s_mov_b32 %s, %s" % (s(r + 2), sz))
            a("s_mov_b32 %s, 0x20000" % s(r + 3))
        a("v_lshl_add_u32 %s, %s, 8, %s" % (v(vV), v(l4), v(vT2)))
        a("s_and_b32 %s, %s, 1" % (s(sT0), s(sW)))
        a("s_lshl_b32 %s, %s, 3" % (s(sT0), s(sT0)))
        a("v_xor_b32 %s, %s, %s" % (v(vT3), v(l16), v(l4)))
        a("v_xor_b32 %s, %s, %s" % (v(vT3), s(sT0), v(vT3)))
        a("v_lshlrev_b32 %s, 4, %s" % (v(vT3), v(vT3)))
        a("v_lshl_add_u32 %s, %s, 8, %s" % (v(vK0), v(l4), v(vT3)))
        a("s_lshl_b32 %s, %s, 11" % (s(sM), s(sQG)))
        a("v_add_u32 %s, %s, %s" % (v(vK0), s(sM), v(vK0)))
        a("v_add_u32 %s, %s, %s" % (v(vV), s(sM), v(vV)))
        a("v_xor_b32 %s, 64, %s" % (v(vK1), v(vK0)))
        a("v_and_b32 %s, 1, %s" % (v(vT3), v(l4)))
        a("v_lshlrev_b32 %s, 2, %s" % (v(vT3), v(vT3)))
        a("v_and_b32 %s, 7, %s" % (v(vWoff), v(vLane)))
        a("v_xor_b32 %s, %s, %s" % (v(vT3), v(vWoff), v(vT3)))
        a("v_lshlrev_b32 %s, 4, %s" % (v(vT3), v(vT3)))
        a("v_lshrrev_b32 %s, 3, %s" % (v(vWoff), v(vLane)))
        a("v_lshl_add_u32 %s, %s, 11, %s" % (v(vWoff), v(vWoff), v(vT3)))
        if tmap == "4x8":
            a("s_bfe_u32 %s, s2, 0x20001" % s(sT0))
            a("s_lshl_b32 %s, %s, 2" % (s(sT0), s(sT0)))
            a("s_lshr_b32 %s, s2, 6" % s(sT1))
            a("s_add_u32 %s, %s, %s" % (s(sQT), s(sT0), s(sT1)))
            a("s_and_b32 %s, s2, 1" % s(sT0))
            a("s_lshl_b32 %s, %s, 3" % (s(sT0), s(sT0)))
            a("s_bfe_u32 %s, s2, 0x30003" % s(sT2))
            a("s_add_u32 %s, %s, %s" % (s(sNT), s(sT0), s(sT2)))
            a("s_lshl_b32 %s, %s, 1" % (s(sT1), s(sT1)))
            a("s_add_u32 %s, %s, %s" % (s(sT1), s(sT1), s(sT2)))
        else:
            a("s_bfe_u32 %s, s2, 0x10002" % s(sT0))
            a("s_lshl_b32 %s, %s, 3" % (s(sT0), s(sT0)))
            a("s_lshr_b32 %s, s2, 5" % s(sT1))
            a("s_add_u32 %s, %s, %s" % (s(sQT), s(sT0), s(sT1)))
            a("s_and_b32 %s, s2, 3" % s(sT0))
            a("s_lshl_b32 %s, %s, 2" % (s(sT0), s(sT0)))
            a("s_bfe_u32 %s, s2, 0x20003" % s(sT2))
            a("s_add_u32 %s, %s, %s" % (s(sNT), s(sT0), s(sT2)))
            a("s_lshl_b32 %s, %s, 1" % (s(sT2), s(sT2)))
            a("s_add_u32 %s, %s, %s" % (s(sT1), s(sT1), s(sT2)))
        if not orot: a("s_mov_b32 %s, 0" % s(sT1))
        a("s_and_b32 %s, %s, 7" % (s(sT1), s(sT1)))
        a("s_lshl_b32 %s, %s, 17" % (s(sWK), s(sT1)))
        a("s_lshl_b32 %s, %s, 12" % (s(sOK), s(sT1)))
        a("s_lshl_b32 %s, %s, 20" % (s(sWB), s(sW)))
        a("s_lshl_b32 %s, %s, 7" % (s(sT0), s(sNT)))
        a("s_add_u32 %s, %s, %s" % (s(sWB), s(sWB), s(sT0)))
        a("s_lshl_b32 %s, %s, 19" % (s(sOB0), s(sQT)))
        a("s_lshl_b32 %s, %s, 15" % (s(sT0), s(sW)))
        a("s_add_u32 %s, %s, %s" % (s(sOB0), s(sOB0), s(sT0)))
        a("s_add_u32 %s, %s, 0x40000" % (s(sOB1), s(sOB0)))
        a("v_and_b32 %s, 1, %s" % (v(vA1), v(vLane)))
        a("v_lshlrev_b32 %s, 4, %s" % (v(vA1), v(vA1)))
        a("v_bfe_u32 %s, %s, 1, 1" % (v(vA2), v(vLane)))
        a("v_lshl_add_u32 %s, %s, 3, %s" % (v(vA1), v(vA2), v(vA1)))
        a("v_bfe_u32 %s, %s, 4, 1" % (v(vA2), v(vLane)))
        a("v_lshl_add_u32 %s, %s, 5, %s" % (v(vA1), v(vA2), v(vA1)))
        a("v_lshrrev_b32 %s, 5, %s" % (v(vA2), v(vLane)))
        a("v_bfe_u32 %s, %s, 2, 2" % (v(vA3), v(vLane)))
        a("v_xor_b32 %s, %s, %s" % (v(vT3), v(vA2), v(l16)))
        a("v_lshlrev_b32 %s, 4, %s" % (v(vT3), v(vT3)))
        a("v_and_b32 %s, 31, %s" % (v(vKb), v(vLane)))
        a("v_lshl_add_u32 %s, %s, 8, %s" % (v(vKb), v(vKb), v(vT3)))
        a("s_lshl_b32 %s, %s, 13" % (s(sT0), s(sKH)))
        a("v_add_u32 %s, %s, %s" % (v(vKb), s(sT0), v(vKb)))
        a("v_lshl_add_u32 %s, %s, 2, %s" % (v(vVb), v(vA2), v(vA3)))
        a("v_lshl_add_u32 %s, %s, 8, %s" % (v(vVb), v(vVb), v(vA1)))
        a("s_lshl_b32 %s, %s, 1" % (s(sT1), s(sKH)))
        a("v_xor_b32 %s, %s, %s" % (v(vT3), s(sT1), v(vA3)))
        a("v_lshl_add_u32 %s, %s, 6, %s" % (v(vVb), v(vT3), v(vVb)))
        a("s_add_u32 %s, %s, 16384" % (s(sT0), s(sT0)))
        a("v_add_u32 %s, %s, %s" % (v(vVb), s(sT0), v(vVb)))
        for i in range(16):
            a("v_mov_b32 %s, 0" % v(vNM + i))
        a("v_mov_b32 %s, 0" % v(vL))
        a("s_mov_b32 %s, 0x%08x" % (s(sThr), f2u(-1.0)))
        a("s_mov_b32 %s, 0xff800000" % s(sDmin))

    def kv_pair(mat, sm0, sso):
        if mat == 0:
            return [["s_mov_b32 m0, %s" % s(sm0), "s_nop 0",
                     "buffer_load_dwordx4 %s, %s, %s offen nt lds" % (v(vK0), s(rK, 4), s(sso))],
                    ["buffer_load_dwordx4 %s, %s, %s offen offset:1024 nt lds" % (v(vK1), s(rK, 4), s(sso))]]
        return [["s_add_u32 m0, %s, 16384" % s(sm0), "s_nop 0",
                 "buffer_load_dwordx4 %s, %s, %s offen nt lds" % (v(vV), s(rV, 4), s(sso))],
                ["buffer_load_dwordx4 %s, %s, %s offen offset:1024 nt lds" % (v(vV), s(rV, 4), s(sso))]]
    def issue_tile_full(slot):
        r = []
        for half in range(2):
            r.append("s_add_u32 %s, %s, %d" % (s(sT0), s(sM), slot * SLOT + half * 8192))
            r.append("s_add_u32 %s, %s, %d" % (s(sT1), s(sKo), half * 8192))
            r += kv_pair(0, sT0, sT1) + kv_pair(1, sT0, sT1)
        r += ["s_add_u32 %s, %s, 16384" % (s(sKo), s(sKo)), "s_and_b32 %s, %s, 0x7ffff" % (s(sKo), s(sKo))]
        return r

    emit(issue_q())
    common_setup()
    for i in range(64):
        a("v_mov_b32 %s, 0" % v(vO + i))
    if early:
        a("s_add_u32 %s, %s, 32768" % (s(sKo), s(sKo)))
        a("s_and_b32 %s, %s, 0x7ffff" % (s(sKo), s(sKo)))
    a("s_mov_b32 %s, 0" % s(sIt))
    a.label("LA_Lq")
    a("s_waitcnt vmcnt(8)")
    a("s_barrier")
    emit(issue_q())
    a("s_add_u32 %s, %s, 1" % (s(sIt), s(sIt)))
    a("s_cmp_lt_u32 %s, 14" % s(sIt))
    a("s_cbranch_scc1 LA_Lq")
    if not early:
        emit(issue_tile_full(3))
    a("s_waitcnt vmcnt(%d)" % (8 if early else 16))
    a("s_barrier")
    if early: emit(issue_tile_full(0))
    a("s_waitcnt vmcnt(8)")
    a("s_barrier")
    if not early: emit(issue_tile_full(4))
    a("s_barrier")
    a("s_lshl_b32 %s, %s, 13" % (s(sT0), s(sQG)))
    a("s_add_u32 %s, %s, %d" % (s(sT0), s(sT0), 2 * SLOT))
    a("v_lshlrev_b32 %s, 4, %s" % (v(vA0), v(vLane)))
    a("v_add_u32 %s, %s, %s" % (v(vA0), s(sT0), v(vA0)))
    if not early: a("s_waitcnt vmcnt(8)")
    a("s_barrier")
    for f in range(8):
        a("ds_read_b128 %s, %s offset:%d" % (v(vQ + 4 * f, 4), v(vA0), f * 1024))
    if not early: emit(issue_tile_full(0))
    a("s_branch LA_attn")

    a.label("LA_Csetup")
    a("s_waitcnt lgkmcnt(0)")
    common_setup()
    a("s_cmp_lg_u32 %s, 0" % s(sW))
    a("s_cbranch_scc1 LA_noinit")
    a("s_lshl_b32 %s, %s, 3" % (s(sT0), s(sB)))
    a("s_lshr_b32 %s, %s, 2" % (s(sT1), s(sH)))
    a("s_add_u32 %s, %s, %s" % (s(sT0), s(sT0), s(sT1)))
    a("s_lshl_b32 %s, %s, 2" % (s(sT2), s(sT0)))
    a("s_mul_i32 %s, %s, %d" % (s(sT0), s(sT0), FLAG_STRIDE))
    a("s_and_b32 %s, %s, 3" % (s(sT1), s(sH)))
    a("s_lshl_b32 %s, %s, 2" % (s(sT1), s(sT1)))
    a("s_add_u32 %s, %s, %s" % (s(sT0), s(sT0), s(sT1)))
    a("s_add_u32 %s, %s, 0x%x" % (s(sMq), s(sT0), FLAG_OFF))
    a("v_mov_b32 %s, 0" % v(vTs))
    a("v_mov_b32 %s, 1" % v(vTs2))
    a("s_mov_b64 exec, 1")
    a("buffer_store_dword %s, %s, %s, %s offen sc1" % (v(vTs), v(vTs), s(rO, 4), s(sMq)))
    a("s_waitcnt vmcnt(0)")
    a("buffer_atomic_add %s, %s, %s, %s offen sc1" % (v(vTs2), v(vTs), s(rD, 4), s(sT2)))
    a("s_mov_b64 exec, -1")
    a.label("LA_noinit")
    a("v_bfe_u32 %s, %s, 1, 3" % (v(vT3), v(vLane)))
    a("v_xor_b32 %s, %s, %s" % (v(vT3), v(vA2), v(vT3)))
    a("v_lshlrev_b32 %s, 4, %s" % (v(vT3), v(vT3)))
    a("v_and_b32 %s, 31, %s" % (v(vX0), v(vLane)))
    a("v_lshl_add_u32 %s, %s, 7, %s" % (v(vX0), v(vX0), v(vT3)))
    a("s_lshl_b32 %s, %s, 12" % (s(sT0), s(sQG)))
    a("v_add_u32 %s, %s, %s" % (v(vX0), s(sT0), v(vX0)))
    a("v_lshl_add_u32 %s, %s, 3, %s" % (v(vW), v(vA2), v(vA3)))
    a("v_lshl_add_u32 %s, %s, 8, %s" % (v(vW), v(vW), v(vA1)))
    a("v_lshl_add_u32 %s, %s, 6, %s" % (v(vW), v(vA3), v(vW)))
    a("v_add_u32 %s, 16384, %s" % (v(vW), v(vW)))
    vQa = vO
    def xf(ks): return vKf + 4 * ks
    def wf(ks, db): return (vVf if ks < 2 else vS) + ((ks % 2) * 4 + db) * 4
    for i in range(64):
        a("v_mov_b32 %s, 0" % v(vQa + i))
    for i in range(8):
        a("v_mov_b32 %s, 0" % v(xf(2) + i))
    for i in range(32):
        a("v_mov_b32 %s, 0" % v(vS + i))
    vXa, vWa = vPb, vPb + 4
    def qreads(ks):
        r = ["ds_read_b128 %s, %s" % (v(xf(ks), 4), v(vXa + ks))]
        for db in range(4):
            for j in range(2):
                r.append("ds_read_b64_tr_b16 %s, %s offset:%d" % (v(wf(ks, db) + 2 * j, 2), v(vWa + db), ks * 4096 + j * 1024))
        return r
    def qmfma(ks, db):
        return "v_mfma_f32_32x32x16_bf16 %s, %s, %s, %s" % (v(vQa + 16 * db, 16), v(wf(ks, db), 4), v(xf(ks), 4), v(vQa + 16 * db, 16))
    def qaddr():
        r = ["v_add_u32 %s, %s, %s" % (v(vXa), s(sCslot), v(vX0)),
             "v_add_u32 %s, %s, %s" % (v(vWa), s(sCslot), v(vW))]
        for i in range(1, 4):
            r.append("v_xor_b32 %s, %d, %s" % (v(vWa + i), 64 * i, v(vWa)))
        for i in range(1, 4):
            r.append("v_xor_b32 %s, %d, %s" % (v(vXa + i), 32 * i, v(vXa)))
        r += ["s_add_u32 %s, %s, %d" % (s(sCslot), s(sCslot), SLOT),
              "s_cmp_ge_u32 %s, %d" % (s(sCslot), SLOT * 3),
              "s_cselect_b32 %s, 0, %s" % (s(sCslot), s(sCslot))]
        return r
    def group(ksm, ksr, pre=None, cuts=(3, 5, 7, 9), post=None):
        rd = qreads(ksr)
        r = list(pre or [])
        p = 0
        for db in range(4):
            r.extend(rd[p:cuts[db]]); p = cuts[db]
            if post and db == 3: r.extend(post)
            r.append(qmfma(ksm, db))
        return r
    def cstage(mat, tag):
        a("s_waitcnt lgkmcnt(0)")
        a("s_barrier")
        emit(group(2, 0))
        emit(group(3, 1))
        emit(group(0, 2, pre=["s_waitcnt lgkmcnt(9)"]))
        if early == 1:
            a("s_cmp_ge_u32 %s, 8" % s(sIt))
            a("s_cbranch_scc1 LA_Cskip%s" % tag)
            emit(kv_pair(mat, sE, sEo))
            if mat == 1:
                a("s_add_u32 %s, %s, 8192" % (s(sEo), s(sEo)))
                a("s_and_b32 %s, %s, 0x7ffff" % (s(sEo), s(sEo)))
                a("s_add_u32 %s, %s, 8192" % (s(sE), s(sE)))
                a("s_bitcmp1_b32 %s, 14" % s(sE))
                a("s_cselect_b32 %s, 16384, 0" % s(sT0))
                a("s_add_u32 %s, %s, %s" % (s(sE), s(sE), s(sT0)))
            a.label("LA_Cskip%s" % tag)
        emit(group(1, 3, pre=["s_waitcnt lgkmcnt(9)"], cuts=(3, 6, 9, 9), post=qaddr()))
    a("s_mov_b32 %s, %d" % (s(sCslot), 2 * SLOT))
    a("s_add_u32 %s, %s, %d" % (s(sE), s(sM), 3 * SLOT))
    a("s_mov_b32 %s, %s" % (s(sEo), s(sKo)))
    a("s_mov_b32 %s, 0" % s(sIt))
    emit(qaddr())
    a.raw(".p2align 6")
    a.label("LA_Cq")
    cstage(0, "0")
    cstage(1, "1")
    a("s_add_u32 %s, %s, 2" % (s(sIt), s(sIt)))
    a("s_cmp_lt_u32 %s, 16" % s(sIt))
    a("s_cbranch_scc1 LA_Cq")
    a("s_waitcnt lgkmcnt(0)")
    a("s_barrier")
    emit([qmfma(ks, db) for ks in (2, 3) for db in range(4)])
    a("s_mov_b32 %s, 0x%08x" % (s(sC), f2u(CSCALE)))
    a("s_lshl_b32 %s, %s, 13" % (s(sT0), s(sQG)))
    a("s_add_u32 %s, %s, %d" % (s(sT0), s(sT0), 2 * SLOT))
    a("v_lshlrev_b32 %s, 4, %s" % (v(vA0), v(vLane)))
    a("v_add_u32 %s, %s, %s" % (v(vA0), s(sT0), v(vA0)))
    a("s_add_u32 %s, %s, 49152" % (s(sKo), s(sKo)))
    a("s_and_b32 %s, %s, 0x7ffff" % (s(sKo), s(sKo)))
    a("s_nop 4")
    for db in range(4):
        for i in range(16):
            a("v_mul_f32 %s, %s, %s" % (v(vQa + 16 * db + i), s(sC), v(vQa + 16 * db + i)))
        for i in range(8):
            a("v_cvt_pk_bf16_f32 %s, %s, %s" % (v(vQ + 8 * db + i), v(vQa + 16 * db + 2 * i), v(vQa + 16 * db + 2 * i + 1)))
        for f in (2 * db, 2 * db + 1):
            a("ds_write_b128 %s, %s offset:%d" % (v(vA0), v(vQ + 4 * f, 4), f * 1024))
    for i in range(64):
        a("v_mov_b32 %s, 0" % v(vO + i))
    a("s_waitcnt vmcnt(0) lgkmcnt(0)")
    a("s_barrier")

    a.label("LA_attn")
    stamp(1)
    a("s_lshl_b32 %s, %s, 13" % (s(sT0), s(sKH)))
    a("s_add_u32 %s, %s, %s" % (s(sM), s(sM), s(sT0)))
    a("v_add_u32 %s, %s, %s" % (v(vK0), s(sT0), v(vK0)))
    a("v_add_u32 %s, %s, %s" % (v(vK1), s(sT0), v(vK1)))
    a("v_add_u32 %s, %s, %s" % (v(vV), s(sT0), v(vV)))
    a("s_mov_b32 %s, %d" % (s(sCslot), 3 * SLOT))
    a("s_mov_b32 %s, %d" % (s(sLim), 5 * SLOT))
    a("s_add_u32 %s, %s, %d" % (s(sIslot), s(sM), 1 * SLOT))
    a("s_add_u32 %s, %s, %d" % (s(sE), s(sM), 3 * SLOT))
    a("s_add_u32 %s, %s, %d" % (s(sBand), s(sM), 6 * BAND))
    a("s_mov_b32 %s, 0" % s(sIt))

    def kreads():
        r = ["v_add_u32 %s, %s, %s" % (v(vP), s(sCslot), v(vKb)),
             "v_add_u32 %s, %s, %s" % (v(vA0), s(sCslot), v(vVb))]
        for f in range(8):
            if f > 0: r.append("v_xor_b32 %s, %d, %s" % (v(vP + f), 32 * f, v(vP)))
            r.append("ds_read_b128 %s, %s" % (v(vKf + 4 * f, 4), v(vP + f)))
        for i in range(1, 4):
            r.append("v_xor_b32 %s, %d, %s" % (v(vA0 + i), 64 * i, v(vA0)))
        r += ["s_add_u32 %s, %s, %d" % (s(sCslot), s(sCslot), SLOT),
              "s_cmp_ge_u32 %s, %s" % (s(sCslot), s(sLim)),
              "s_cselect_b32 %s, 0, %s" % (s(sCslot), s(sCslot)),
              "s_cselect_b32 %s, %d, %s" % (s(sLim), 3 * SLOT, s(sLim))]
        return r
    vreads = []
    for kk in range(2):
        for ai in range(4):
            for j in range(2):
                vreads.append("ds_read_b64_tr_b16 %s, %s offset:%d" % (v(vVf + (kk * 4 + ai) * 4 + 2 * j, 2), v(vA0 + ai), kk * 4096 + j * 2048))
    def qk():
        r = ["s_waitcnt lgkmcnt(0)"]
        for f in range(8):
            r.append("v_mfma_f32_32x32x16_bf16 %s, %s, %s, %s" % (v(vS, 16), v(vKf + 4 * f, 4), v(vQ + 4 * f, 4), v(vNM, 16) if f == 0 else v(vS, 16)))
            if f < 5: r.extend(vreads[3 * f:3 * f + 3])
            if f == 5: r.append(vreads[15])
        return r
    def pv(tag):
        m = []
        for kk in range(2):
            for ai in range(4):
                m.append("v_mfma_f32_32x32x16_bf16 %s, %s, %s, %s" % (v(vO + 16 * ai, 16), v(vVf + (kk * 4 + ai) * 4, 4), v(vPb + 4 * kk, 4), v(vO + 16 * ai, 16)))
        a(m[0])
        a("s_cmp_ge_u32 %s, 29" % s(sIt))
        a("s_cbranch_scc1 LA_s0%s" % tag)
        emit(kv_pair(0, sIslot, sKo))
        a.label("LA_s0%s" % tag)
        emit(m[1:4])
        a("s_cmp_ge_u32 %s, 29" % s(sIt))
        a("s_cbranch_scc1 LA_s1%s" % tag)
        emit(kv_pair(1, sIslot, sKo))
        a("s_add_u32 %s, %s, 16384" % (s(sKo), s(sKo)))
        a("s_and_b32 %s, %s, 0x7ffff" % (s(sKo), s(sKo)))
        a("s_add_u32 %s, %s, %d" % (s(sIslot), s(sIslot), SLOT))
        a("s_cmp_ge_u32 %s, %s" % (s(sIslot), s(sE)))
        a("s_cselect_b32 %s, %s, %s" % (s(sIslot), s(sM), s(sIslot)))
        a.label("LA_s1%s" % tag)
        emit(m[4:7])
        a("s_cmp_ge_u32 %s, %d" % (s(sIt), wo_it))
        a("s_cbranch_scc1 LA_wo%s" % tag)
        a.label("LA_wob%s" % tag)
        a(m[7])
    def exps_and_sum():
        r = []
        for j in range(16):
            r.append("v_exp_f32 %s, %s" % (v(vP + j), v(vS + j)))
            if j == 2: r.append("v_add_f32 %s, %s, %s" % (v(vTs), v(vP + 0), v(vP + 1)))
            if j == 4: r.append("v_add_f32 %s, %s, %s" % (v(vTs2), v(vP + 2), v(vP + 3)))
            if j >= 6 and j % 2 == 0:
                r.append("v_add_f32 %s, %s, %s" % (v(vTs), v(vP + j - 2), v(vTs)))
                r.append("v_add_f32 %s, %s, %s" % (v(vTs2), v(vP + j - 1), v(vTs2)))
        r.append("v_add_f32 %s, %s, %s" % (v(vTs), v(vP + 14), v(vTs)))
        r.append("s_nop 0")
        r.append("v_add_f32 %s, %s, %s" % (v(vTs2), v(vP + 15), v(vTs2)))
        r.append("v_add_f32 %s, %s, %s" % (v(vTs), v(vTs2), v(vTs)))
        return r
    def softmax(tag):
        emit(exps_and_sum())
        a("v_cmp_lt_f32 vcc, %s, %s" % (s(sThr), v(vTs)))
        a("s_cbranch_vccnz LA_rare%s" % tag)
        a.label("LA_back%s" % tag)
        for j in range(8):
            a("v_cvt_pk_bf16_f32 %s, %s, %s" % (v(vPb + j), v(vP + 2 * j), v(vP + 2 * j + 1)))
        a("v_add_f32 %s, %s, %s" % (v(vL), v(vTs), v(vL)))

    emit(kreads())
    a("s_cmp_eq_u32 %s, 0" % s(sKH))
    a("s_cbranch_scc1 LA_A_qk")
    a("s_branch LA_B_qk")
    a.raw(".p2align 6")
    a.label("LA_A")
    a("s_waitcnt vmcnt(4) lgkmcnt(0)")
    a("s_barrier")
    emit(kreads())
    pv("A")
    a("s_add_u32 %s, %s, 1" % (s(sIt), s(sIt)))
    a("s_cmp_ge_u32 %s, 32" % s(sIt))
    a("s_cbranch_scc1 LA_done")
    a.label("LA_A_qk")
    emit(qk())
    a("s_nop 7")
    a("s_nop 3")
    softmax("A")
    a("s_branch LA_A")
    a.raw(".p2align 6")
    a.label("LA_B")
    a("s_waitcnt vmcnt(4) lgkmcnt(0)")
    a("s_barrier")
    emit(kreads())
    softmax("B")
    a("s_nop 1")
    pv("B")
    a("s_add_u32 %s, %s, 1" % (s(sIt), s(sIt)))
    a("s_cmp_ge_u32 %s, 32" % s(sIt))
    a("s_cbranch_scc1 LA_done")
    a.label("LA_B_qk")
    emit(qk())
    a("s_branch LA_B")

    def wo_step(m0expr):
        return m0expr + [
            "s_add_u32 %s, %s, %s" % (s(sT0), s(sWB), s(sWK)),
            "buffer_load_dwordx4 %s, %s, %s offen lds" % (v(vWoff), s(rWO, 4), s(sT0)),
            "s_add_u32 m0, m0, 1024",
            "s_add_u32 %s, %s, 16384" % (s(sT0), s(sT0)),
            "buffer_load_dwordx4 %s, %s, %s offen lds" % (v(vWoff), s(rWO, 4), s(sT0)),
            "s_add_u32 %s, %s, 32768" % (s(sWK), s(sWK)),
            "s_and_b32 %s, %s, 0xfffff" % (s(sWK), s(sWK))]

    a.label("LA_done")
    stamp(2)
    vm = Cnt(a, "vmcnt", 63)
    lg = Cnt(a, "lgkmcnt", 15)
    vWr0, vWr1, vOo = vK0, vK1, vV
    def Areg(e): e %= F; return (112 + 8 * e) if e < 8 else (48 + 8 * (e - 8))
    def Breg(e): e %= D; return (16 + 8 * e) if e < 4 else (240 + 8 * (e - 4))
    vAcc = vO
    a("v_mov_b32 %s, %s" % (v(vTs), v(vL)))
    a("v_and_b32 %s, 1, %s" % (v(vT0), v(vLane)))
    a("v_permlane32_swap_b32 %s, %s" % (v(vL), v(vTs))) if False else None
    a("v_lshlrev_b32 %s, 4, %s" % (v(vT0), v(vT0)))
    a("v_permlane32_swap_b32 %s, %s" % (v(vL), v(vTs)))
    a("v_bfe_u32 %s, %s, 1, 1" % (v(vT1), v(vLane)))
    a("v_add_f32 %s, %s, %s" % (v(vNM + 1), v(vL), v(vTs)))
    a("v_lshl_add_u32 %s, %s, 3, %s" % (v(vT0), v(vT1), v(vT0)))
    a("v_bfe_u32 %s, %s, 4, 1" % (v(vT1), v(vLane)))
    a("v_lshl_add_u32 %s, %s, 5, %s" % (v(vT0), v(vT1), v(vT0)))
    a("v_bfe_u32 %s, %s, 3, 1" % (v(vT1), v(vLane)))
    a("v_lshl_add_u32 %s, %s, 6, %s" % (v(vT0), v(vT1), v(vT0)))
    a("v_bfe_u32 %s, %s, 2, 2" % (v(vT1), v(vLane)))
    a("v_lshl_add_u32 %s, %s, 7, %s" % (v(vT0), v(vT1), v(vT0)))
    a("v_lshrrev_b32 %s, 5, %s" % (v(vT1), v(vLane)))
    a("v_lshl_add_u32 %s, %s, 10, %s" % (v(vT0), v(vT1), v(vT0)))
    a("v_add_u32 %s, %s, %s" % (v(vWr0), s(sM), v(vT0)))
    a("v_xor_b32 %s, 64, %s" % (v(vWr1), v(vWr0)))
    a("v_lshlrev_b32 %s, 4, %s" % (v(vOo), v(vLane)))
    vWrH = [(vWr0, vWr1), (vX0, vX1), (vW, vKb)]
    for hi in (1, 2):
        a("v_add_u32 %s, 0x%x, %s" % (v(vWrH[hi][0]), hi * 65536, v(vWr0)))
        a("v_add_u32 %s, 0x%x, %s" % (v(vWrH[hi][1]), hi * 65536, v(vWr1)))
    a("s_lshl_b32 %s, %s, 13" % (s(sT0), s(sW)))
    a("s_xor_b32 %s, %s, 0x8000" % (s(sT1), s(sT0)))
    a("s_add_u32 %s, %s, %d" % (s(sT0), s(sT0), SLOT))
    a("s_add_u32 %s, %s, %d" % (s(sT1), s(sT1), SLOT))
    a("v_add_u32 %s, %s, %s" % (v(vA2), s(sT0), v(vOo)))
    a("v_add_u32 %s, %s, %s" % (v(vA0), s(sT1), v(vOo)))
    a("s_lshl_b32 %s, %s, 9" % (s(sT0), s(sW)))
    a("s_xor_b32 %s, %s, 0x800" % (s(sT1), s(sT0)))
    a("s_add_u32 %s, %s, %d" % (s(sT0), s(sT0), 9 * BAND))
    a("s_add_u32 %s, %s, %d" % (s(sT1), s(sT1), 9 * BAND))
    a("v_lshlrev_b32 %s, 3, %s" % (v(vT0), v(vLane)))
    a("v_add_u32 %s, %s, %s" % (v(vA3), s(sT0), v(vT0)))
    a("v_add_u32 %s, %s, %s" % (v(vA1), s(sT1), v(vT0)))
    a("s_waitcnt lgkmcnt(0)")
    a("ds_write_b64 %s, %s" % (v(vA3), v(vNM, 2)))
    for i in range(8):
        a("ds_write_b128 %s, %s offset:%d" % (v(vA2), v(vO + 32 + 4 * i, 4), i * 1024))
    band_of = {0: 6, 1: 7, 2: 8, 3: 0, 4: 1}
    st = {"dma": 5}
    def rd(step):
        b = band_of[step]
        hi, lo = divmod(b, 4)
        for nb in range(2):
            for j in range(2):
                a("ds_read_b64_tr_b16 %s, %s offset:%d" % (v(Areg(step) + nb * 4 + 2 * j, 2), v(vWrH[hi][nb]), lo * BAND + j * 512))
                lg.issue(("A", step))
    def dma(band):
        step = st["dma"]
        if step >= 32: return
        st["dma"] += 1
        band_of[step] = band
        emit(wo_step(["s_add_u32 m0, %s, %d" % (s(sM), band * BAND)]))
        vm.issue(("W", step)); vm.issue(("W", step))
    a("s_waitcnt vmcnt(0) lgkmcnt(0)")
    a("s_barrier")
    a("ds_read_b64 %s, %s" % (v(vNM + 2, 2), v(vA1))); lg.issue("ml")
    for i in range(8):
        a("ds_read_b128 %s, %s offset:%d" % (v(vO + 32 + 4 * i, 4), v(vA0), i * 1024)); lg.issue("ox")
    a("s_lshl_b32 %s, %s, 2" % (s(sT2), s(sB)))
    a("s_add_u32 %s, %s, %s" % (s(sT2), s(sT2), s(sQG)))
    a("s_lshl_b32 %s, %s, 5" % (s(sT2), s(sT2)))
    a("s_add_u32 %s, %s, %s" % (s(sT2), s(sT2), s(sH)))
    a("s_lshl_b32 %s, %s, 13" % (s(sT2), s(sT2)))
    a("s_lshl_b32 %s, %s, 12" % (s(sT1), s(sKH)))
    a("s_add_u32 %s, %s, %s" % (s(sT2), s(sT2), s(sT1)))
    lg.wait("ml")
    n0, l0, n1, l1 = vNM, vNM + 1, vNM + 2, vNM + 3
    mf, s0_, s1_, lf = vNM + 4, vNM + 5, vNM + 6, vNM + 7
    a("v_min_f32 %s, %s, %s" % (v(mf), v(n0), v(n1)))
    a("v_sub_f32 %s, %s, %s" % (v(s0_), v(mf), v(n0)))
    a("v_sub_f32 %s, %s, %s" % (v(s1_), v(mf), v(n1)))
    a("v_exp_f32 %s, %s" % (v(s0_), v(s0_)))
    a("v_exp_f32 %s, %s" % (v(s1_), v(s1_)))
    a("s_nop 0")
    a("v_mul_f32 %s, %s, %s" % (v(lf), v(l0), v(s0_)))
    a("v_fma_f32 %s, %s, %s, %s" % (v(lf), v(l1), v(s1_), v(lf)))
    a("v_rcp_f32 %s, %s" % (v(lf), v(lf)))
    a("s_nop 0")
    a("v_mul_f32 %s, %s, %s" % (v(s0_), v(s0_), v(lf)))
    a("v_mul_f32 %s, %s, %s" % (v(s1_), v(s1_), v(lf)))
    for i in range(32):
        a("v_mul_f32 %s, %s, %s" % (v(vO + i), v(s0_), v(vO + i)))
    lg.wait("ox")
    for f in range(4):
        for i in range(8 * f, 8 * f + 8):
            a("v_fma_f32 %s, %s, %s, %s" % (v(vO + i), v(s1_), v(vO + 32 + i), v(vO + i)))
        for i in range(4 * f, 4 * f + 4):
            a("v_cvt_pk_bf16_f32 %s, %s, %s" % (v(vP + i), v(vO + 2 * i), v(vO + 2 * i + 1)))
        a("buffer_store_dwordx4 %s, %s, %s, %s offen offset:%d sc1" % (v(vP + 4 * f, 4), v(vOo), s(rO, 4), s(sT2), f * 1024))
        vm.issue("st")
    for step in range(5): rd(step)
    for i in range(64):
        a("v_mov_b32 %s, 0" % v(vAcc + i))
    a("s_waitcnt vmcnt(0) lgkmcnt(0)"); vm.drain(False); lg.drain(False)
    a("s_barrier")
    stamp(3)
    a("v_mov_b32 %s, 0" % v(vT0))
    a("v_mov_b32 %s, 1" % v(vT1))
    a("s_cmp_lg_u32 %s, 0" % s(sW))
    a("s_cbranch_scc1 LA_noflag")
    a("s_mov_b64 exec, 1")
    a("buffer_store_dword %s, %s, %s, %s offen sc1" % (v(vT1), v(vT0), s(rO, 4), s(sMq)))
    a("s_mov_b64 exec, -1")
    a.label("LA_noflag")
    vm.issue("flag")
    vm.ops = []
    if notail:
        a("s_branch LA_fin")
    a("s_lshr_b32 %s, %s, 1" % (s(sT2), s(sQT)))
    a("s_lshl_b32 %s, %s, 3" % (s(sT2), s(sT2)))
    a("s_add_u32 %s, %s, %s" % (s(sT2), s(sT2), s(sW)))
    a("s_lshl_b32 %s, %s, 2" % (s(sLim), s(sT2)))
    a("s_mul_i32 %s, %s, %d" % (s(sE), s(sT2), FLAG_STRIDE))
    a("s_add_u32 %s, %s, 0x%x" % (s(sE), s(sE), FLAG_OFF))
    a("buffer_load_dword %s, %s, %s, %s offen sc1" % (v(vT2), v(vT0), s(rD, 4), s(sLim))); vm.issue("init")
    for b in (6, 7, 8, 0, 1, 2, 3, 4, 5, 9): dma(b)
    nread = 5
    pend = []
    while nread < F:
        vm.wait(("W", nread))
        rd(nread)
        pend.append(nread)
        if len(pend) > 1:
            p = pend.pop(0)
            lg.wait(("A", p))
            dma(band_of[p])
        nread += 1
    for p in pend:
        lg.wait(("A", p)); dma(band_of[p])
    pend = []
    stamp(4)
    a("s_mov_b32 %s, 0" % s(sSpin))
    a.label("LA_init")
    a("v_readfirstlane_b32 %s, %s" % (s(sT0), v(vT2)))
    a("s_add_u32 %s, %s, 1" % (s(sSpin), s(sSpin)))
    a("s_cmp_eq_u32 %s, 4" % s(sT0))
    a("s_cbranch_scc1 LA_poll")
    a("s_cmp_ge_u32 %s, %d" % (s(sSpin), SPIN_MAX))
    a("s_cbranch_scc1 LA_poll")
    a("s_sleep 8")
    a("buffer_load_dword %s, %s, %s, %s offen sc1" % (v(vT2), v(vT0), s(rD, 4), s(sLim)))
    a("s_waitcnt vmcnt(0)")
    a("s_branch LA_init")
    vF = Breg(0)
    a.label("LA_poll")
    a("buffer_load_dwordx4 %s, %s, %s, %s offen sc1" % (v(vF, 4), v(vT0), s(rO, 4), s(sE)))
    a("s_add_u32 %s, %s, 1" % (s(sSpin), s(sSpin)))
    a("s_waitcnt vmcnt(0)")
    a("v_and_b32 %s, %s, %s" % (v(vF), v(vF), v(vF + 1)))
    a("v_and_b32 %s, %s, %s" % (v(vF + 2), v(vF + 2), v(vF + 3)))
    a("v_and_b32 %s, %s, %s" % (v(vF), v(vF), v(vF + 2)))
    a("s_nop 0")
    a("v_readfirstlane_b32 %s, %s" % (s(sT0), v(vF)))
    a("s_cmp_eq_u32 %s, 1" % s(sT0))
    a("s_cbranch_scc1 LA_go")
    a("s_cmp_ge_u32 %s, %d" % (s(sSpin), SPIN_MAX))
    a("s_cbranch_scc1 LA_go")
    a("s_sleep 4")
    a("s_branch LA_poll")
    a.label("LA_go")
    vm.drain(False)
    stamp(5)
    if ts: a("s_waitcnt lgkmcnt(0)")
    lg.drain(False) if ts else None
    def oload(i):
        if i >= 32: return
        a("s_add_u32 %s, %s, %s" % (s(sT0), s(sOB0), s(sOK)))
        a("s_add_u32 %s, %s, %s" % (s(sT1), s(sOB1), s(sOK)))
        a("buffer_load_dwordx4 %s, %s, %s, %s offen sc1" % (v(Breg(i), 4), v(vOo), s(rO, 4), s(sT0))); vm.issue(("O", i))
        a("buffer_load_dwordx4 %s, %s, %s, %s offen sc1" % (v(Breg(i) + 4, 4), v(vOo), s(rO, 4), s(sT1))); vm.issue(("O", i))
        a("s_add_u32 %s, %s, 1024" % (s(sOK), s(sOK)))
        a("s_and_b32 %s, %s, 0x7fff" % (s(sOK), s(sOK)))
    for i in range(D): oload(i)
    for i in range(32):
        vm.wait(("O", i))
        lg.wait(("A", i))
        for u in range(2):
            for nb in range(2):
                acc = vAcc + (u * 2 + nb) * 16
                a("v_mfma_f32_32x32x16_bf16 %s, %s, %s, %s" % (v(acc, 16), v(Areg(i) + nb * 4, 4), v(Breg(i) + u * 4, 4), v(acc, 16)))
        oload(i + D)
        for p in pend:
            lg.wait(("A", p)); dma(band_of[p])
        pend = []
        if i + F < 32:
            vm.wait(("W", i + F))
            rd(i + F)
            pend.append(i + F)
    stamp(6)
    a("v_and_b32 %s, 7, %s" % (v(vT0), v(vLane)))
    a("v_lshrrev_b32 %s, 5, %s" % (v(vT1), v(vLane)))
    a("v_lshlrev_b32 %s, 1, %s" % (v(vT1), v(vT1)))
    a("v_xor_b32 %s, %s, %s" % (v(vT1), v(vT1), v(vT0)))
    a("v_lshlrev_b32 %s, 4, %s" % (v(vT1), v(vT1)))
    a("v_lshl_add_u32 %s, %s, 8, %s" % (v(vT1), v(vT0), v(vT1)))
    a("v_bfe_u32 %s, %s, 3, 2" % (v(vT2), v(vLane)))
    a("v_lshl_add_u32 %s, %s, 14, %s" % (v(vT1), v(vT2), v(vT1)))
    wa = 16
    a("v_add_u32 %s, %s, %s" % (v(wa), s(sM), v(vT1)))
    for g in range(1, 4):
        a("v_xor_b32 %s, %d, %s" % (v(wa + g), (4 * (g // 2) + g % 2) * 16, v(wa)))
    for g in range(4):
        a("v_add_u32 %s, 0x10000, %s" % (v(wa + 4 + g), v(wa + g)))
    a("v_lshrrev_b32 %s, 3, %s" % (v(vT2), v(vLane)))
    a("v_lshlrev_b32 %s, 1, %s" % (v(vT3), v(vT0)))
    a("v_xor_b32 %s, %s, %s" % (v(vT3), v(vT3), v(vT2)))
    a("v_lshlrev_b32 %s, 4, %s" % (v(vT3), v(vT3)))
    a("v_lshl_add_u32 %s, %s, 8, %s" % (v(vT3), v(vT2), v(vT3)))
    a("s_lshl_b32 %s, %s, 14" % (s(sT0), s(sW)))
    a("v_add_u32 %s, %s, %s" % (v(vT3), s(sT0), v(vT3)))
    a("v_xor_b32 %s, 16, %s" % (v(vT1), v(vT3)))
    a("v_lshlrev_b32 %s, 11, %s" % (v(vT2), v(vT2)))
    a("v_lshl_add_u32 %s, %s, 4, %s" % (v(vT2), v(vT0), v(vT2)))
    a("s_lshl_b32 %s, %s, 17" % (s(sT1), s(sQT)))
    a("s_add_u32 %s, %s, %s" % (s(sT0), s(sT0), s(sT1)))
    a("s_lshl_b32 %s, %s, 7" % (s(sT1), s(sNT)))
    a("s_add_u32 %s, %s, %s" % (s(sT0), s(sT0), s(sT1)))
    for u in range(2):
        for nb in range(2):
            for g in range(4):
                a("ds_write_b128 %s, %s offset:%d" % (v(wa + 4 * u + g), v(vAcc + (u * 2 + nb) * 16 + 4 * g, 4), nb * 128))
    a("s_waitcnt lgkmcnt(0)")
    a("s_barrier")
    vR = 48
    for p in range(8):
        a("ds_read_b128 %s, %s offset:%d" % (v(vR + p * 8, 4), v(vT3), p * 2048))
        a("ds_read_b128 %s, %s offset:%d" % (v(vR + p * 8 + 4, 4), v(vT1), p * 2048))
    for p in range(1, 8):
        a("s_waitcnt lgkmcnt(%d)" % (14 - 2 * p))
        for i in range(8):
            a("v_add_f32 %s, %s, %s" % (v(vR + i), v(vR + p * 8 + i), v(vR + i)))
    for i in range(4):
        a("v_cvt_pk_bf16_f32 %s, %s, %s" % (v(24 + i), v(vR + 2 * i), v(vR + 2 * i + 1)))
    a("buffer_store_dwordx4 %s, %s, %s, %s offen" % (v(24, 4), v(vT2), s(rOut, 4), s(sT0)))
    a.label("LA_fin")
    if ts:
        a("s_waitcnt vmcnt(0)")
        stamp(7)
        a("s_waitcnt lgkmcnt(0)")
        for i in range(8): a("v_mov_b32 v%d, %s" % (24 + i, s(sTS + 2 * i)))
        a("s_lshl_b32 %s, s2, 8" % s(sT0))
        a("s_lshl_b32 %s, %s, 5" % (s(sT1), s(sW)))
        a("s_add_u32 %s, %s, %s" % (s(sT0), s(sT0), s(sT1)))
        a("s_add_u32 %s, %s, 0x1000000" % (s(sT0), s(sT0)))
        a("v_mov_b32 v8, 0")
        a("buffer_store_dwordx4 v[24:27], v8, %s, %s offen" % (s(rO, 4), s(sT0)))
        a("buffer_store_dwordx4 v[28:31], v8, %s, %s offen offset:16" % (s(rO, 4), s(sT0)))
    a.label("LA_end")
    a("s_endpgm")
    for tag in ("A", "B"):
        a.label("LA_wo%s" % tag)
        a("s_cmp_ge_u32 %s, 30" % s(sIt))
        a("s_cbranch_scc1 LA_wob%s" % tag)
        if wo_it < 27:
            a("s_cmp_eq_u32 %s, 29" % s(sIt))
            a("s_cbranch_scc1 LA_wog%s" % tag)
            a("s_cmp_ge_u32 %s, %d" % (s(sIt), wo_it + 2))
            a("s_cbranch_scc1 LA_wob%s" % tag)
            a.label("LA_wog%s" % tag)
        emit(wo_step(["s_mov_b32 m0, %s" % s(sBand)]))
        a("s_add_u32 %s, %s, %d" % (s(sBand), s(sBand), BAND))
        a("s_cmp_eq_u32 %s, %d" % (s(sIt), wo_it + 1))
        a("s_cselect_b32 %s, %s, %s" % (s(sBand), s(sM), s(sBand)))
        a("s_cbranch_scc1 LA_wob%s" % tag)
        emit(wo_step(["s_mov_b32 m0, %s" % s(sBand)]))
        a("s_add_u32 %s, %s, %d" % (s(sBand), s(sBand), BAND))
        a("s_branch LA_wob%s" % tag)
        a.label("LA_rare%s" % tag)
        t, t2, d, al = vTs, vTs2, vT0, vT1
        a("v_max3_f32 %s, %s, %s, %s" % (v(t), v(vS), v(vS + 1), v(vS + 2)))
        for j in range(3, 15, 2):
            a("v_max3_f32 %s, %s, %s, %s" % (v(t), v(t), v(vS + j), v(vS + j + 1)))
        a("v_max_f32 %s, %s, %s" % (v(t), v(t), v(vS + 15)))
        a("v_mov_b32 %s, %s" % (v(t2), v(t)))
        a("s_nop 1")
        a("v_permlane32_swap_b32 %s, %s" % (v(t), v(t2)))
        a("s_nop 0")
        a("v_max_f32 %s, %s, %s" % (v(t), v(t), v(t2)))
        a("v_max_f32 %s, %s, %s" % (v(d), s(sDmin), v(t)))
        a("v_max_f32 %s, 0, %s" % (v(al), v(d)))
        a("v_sub_f32 %s, 0, %s" % (v(al), v(al)))
        a("v_exp_f32 %s, %s" % (v(al), v(al)))
        for j in range(16):
            a("v_sub_f32 %s, %s, %s" % (v(vNM + j), v(vNM + j), v(d)))
            a("v_sub_f32 %s, %s, %s" % (v(vS + j), v(vS + j), v(d)))
        for i in range(64):
            a("v_mul_f32 %s, %s, %s" % (v(vO + i), v(al), v(vO + i)))
        a("v_mul_f32 %s, %s, %s" % (v(vL), v(al), v(vL)))
        emit(exps_and_sum())
        a("s_mov_b32 %s, 0x%08x" % (s(sThr), f2u(THR)))
        a("s_mov_b32 %s, 0" % s(sDmin))
        a("s_branch LA_back%s" % tag)
    return NV, NS

def main(out, **kw):
    a = Asm()
    NA = "standalone__mha_block_cached__near_ridge_kernel"
    a.raw("; @launch grid=(256,1,1) block=(512,1,1) lds=163840")
    a.raw('.amdgcn_target "amdgcn-amd-amdhsa--gfx950"')
    a.raw(".text")
    nv, ns = gen(a, NA, **kw)
    a.raw('.section .rodata,"a"')
    kernel_desc(a, NA, nv, ns)
    open(out, "w").write(a.text())

if __name__ == "__main__":
    main("k5.s")
    main("k5_ts.s", ts=1)
    main("k5_84_ts.s", ts=1, tmap="8x4")
    main("k5_e1_ts.s", ts=1, early=1)
```

```python
import sys, struct
from gen1 import Asm, v, s, f2u, kernel_header, kernel_desc
from gen5 import Cnt

SLOT = 32768
BAND = 16384
CSCALE = 1.4426950408889634 / (128 ** 0.5)
THR = 4096.0
FLAG_OFF = 0x800000
FLAG_STRIDE = 4352
SPIN_MAX = 1 << 20
MF = "v_mfma_f32_16x16x32_bf16"

def gen(a, name, rot=True, qrot=1, ts=0, tmap="8x4", orot=3, W=24, b0=4, bmask=7, per=4, prioH=0, bad=True, allbad=False):
    F, D = 16, 3
    kernel_header(a, name)
    sX, sKp, sVp, sWQ = 4, 6, 8, 10
    sWO, sOUT, sDBG, sWS = 12, 14, 16, 18
    rK, rV, rX, rW, rO = 20, 24, 28, 32, 36
    sW, sQG, sB, sH = 40, 41, 43, 44
    sT0, sT1, sT2 = 45, 46, 47
    sIslot, sCslot, sIt = 48, 49, 50
    sXo, sWo, sKoK, sKoV = 51, 52, 53, 42
    sM, sMq = 54, 55
    sThr, sDmin, sC = 56, 57, 58
    sE, sLim, sNTo = 59, 61, 60
    sQT, sNT, sWB, sWK0 = 62, 63, 64, 66
    sOB0, sOK, sSpin = 67, 69, 70
    sBad, sWKH = 65, 68
    rWO, rD, rOut = 72, 76, 80
    sTS = 84
    NS = 100
    vLane, vT0, vT1, vT2, vT3 = 1, 2, 3, 4, 5
    vKb, vVb, vL0, vL1, vTs, vTs2 = 6, 7, 8, 9, 10, 11
    vXb, vWb = 10, 11
    vQ, vNM, vVa, vS0, vS1, vP, vKf, vVf, vO, vPb = 16, 48, 56, 64, 80, 96, 112, 144, 176, 240
    vWoff, vOo = 6, 7
    vWr = 8
    vWrT = 12
    vX0, vX1, vW0, vW1 = 16, 17, 18, 19
    vKd, vVd = 20, 24
    NV = 256
    def emit(lst):
        for x in lst:
            if isinstance(x, list): emit(x)
            else: a(x)
    def stamp(i):
        if ts: a("s_memrealtime %s" % s(sTS + 2 * i, 2))
    def srd(r, lo, hi, sz):
        a("s_mov_b32 %s, %s" % (s(r), lo)); a("s_mov_b32 %s, %s" % (s(r + 1), hi))
        a("s_mov_b32 %s, %s" % (s(r + 2), sz)); a("s_mov_b32 %s, 0x20000" % s(r + 3))
    def mfma(d, x, y, c): return "%s %s, %s, %s, %s" % (MF, v(d, 4), v(x, 4), v(y, 4), v(c, 4))

    a("s_cmp_ge_u32 s2, 256")
    a("s_cbranch_scc1 LA_end")
    stamp(0)
    a("s_load_dwordx8 s[4:11], s[0:1], 0")
    a("s_load_dwordx8 s[12:19], s[0:1], 32")
    a("v_lshrrev_b32 %s, 6, v0" % v(vT0))
    a("v_and_b32 %s, 63, v0" % v(vLane))
    a("v_readfirstlane_b32 %s, %s" % (s(sW), v(vT0)))
    a("s_and_b32 %s, s2, 7" % s(sT0))
    a("s_lshl_b32 %s, %s, 2" % (s(sT0), s(sT0)))
    a("s_bfe_u32 %s, s2, 0x20003" % s(sT1))
    a("s_add_u32 %s, %s, %s" % (s(sH), s(sT0), s(sT1)))
    a("s_lshr_b32 %s, s2, 5" % s(sB))
    a("s_and_b32 %s, %s, 3" % (s(sQG), s(sW)))
    l16, l4 = vT0, vT1
    a("v_and_b32 %s, 15, %s" % (v(l16), v(vLane)))
    a("v_lshrrev_b32 %s, 4, %s" % (v(l4), v(vLane)))
    a("s_cmp_lt_u32 %s, 4" % s(sW))
    a("s_cbranch_scc1 LA_C")

    def tail_scalar_setup():
        for (r, p, sz) in ((rO, sWS, "0x2000000" if ts else "0x900000"), (rWO, sWO, "0x800000"), (rD, sDBG, "256"), (rOut, sOUT, "0x200000")):
            srd(r, s(p), s(p + 1), sz)
        a("s_lshl_b32 %s, %s, 11" % (s(sM), s(sW)))
        if tmap == "4x8":
            a("s_bfe_u32 %s, s2, 0x20001" % s(sT0))
            a("s_lshl_b32 %s, %s, 2" % (s(sT0), s(sT0)))
            a("s_lshr_b32 %s, s2, 6" % s(sT1))
            a("s_add_u32 %s, %s, %s" % (s(sQT), s(sT0), s(sT1)))
            a("s_and_b32 %s, s2, 1" % s(sT0))
            a("s_lshl_b32 %s, %s, 3" % (s(sT0), s(sT0)))
            a("s_bfe_u32 %s, s2, 0x30003" % s(sT2))
            a("s_add_u32 %s, %s, %s" % (s(sNT), s(sT0), s(sT2)))
            if orot == 2: a("s_and_b32 %s, %s, 6" % (s(sT2), s(sT2)))
            if orot == 3: a("s_and_b32 %s, %s, 4" % (s(sT2), s(sT2)))
            a("s_lshl_b32 %s, %s, 1" % (s(sT1), s(sT1)))
            a("s_add_u32 %s, %s, %s" % (s(sT1), s(sT1), s(sT2)))
        else:
            a("s_bfe_u32 %s, s2, 0x10002" % s(sT0))
            a("s_lshl_b32 %s, %s, 3" % (s(sT0), s(sT0)))
            a("s_lshr_b32 %s, s2, 5" % s(sT1))
            a("s_add_u32 %s, %s, %s" % (s(sQT), s(sT0), s(sT1)))
            a("s_and_b32 %s, s2, 3" % s(sT0))
            a("s_lshl_b32 %s, %s, 2" % (s(sT0), s(sT0)))
            a("s_bfe_u32 %s, s2, 0x20003" % s(sT2))
            a("s_add_u32 %s, %s, %s" % (s(sNT), s(sT0), s(sT2)))
            if orot == 2: a("s_and_b32 %s, %s, 2" % (s(sT2), s(sT2)))
            if orot == 3: a("s_mov_b32 %s, 0" % s(sT2))
            a("s_lshl_b32 %s, %s, 1" % (s(sT2), s(sT2)))
            a("s_add_u32 %s, %s, %s" % (s(sT1), s(sT1), s(sT2)))
        if not orot: a("s_mov_b32 %s, 0" % s(sT1))
        a("s_and_b32 %s, %s, 7" % (s(sT1), s(sT1)))
        a("s_lshl_b32 %s, %s, 17" % (s(sWK0), s(sT1)))
        a("s_lshl_b32 %s, %s, 11" % (s(sOK), s(sT1)))
        a("s_lshl_b32 %s, %s, 7" % (s(sNTo), s(sNT)))
        a("s_and_b32 %s, %s, 7" % (s(sT0), s(sNT)))
        a("s_cmp_eq_u32 %s, %d" % (s(sT0), 3 if bad else 99))
        a("s_cselect_b32 %s, 1, %d" % (s(sBad), 1 if allbad else 0))
        a("s_cmp_eq_u32 %s, 1" % s(sBad))
        a("s_cselect_b32 %s, 0, 0x80000" % s(sWKH))
        a("s_add_u32 %s, %s, %s" % (s(sWKH), s(sWKH), s(sWK0)))
        a("s_lshl_b32 %s, %s, 20" % (s(sWB), s(sW)))
        a("s_add_u32 %s, %s, %s" % (s(sWB), s(sWB), s(sNTo)))
        a("s_lshl_b32 %s, %s, 19" % (s(sOB0), s(sQT)))
        a("s_lshl_b32 %s, %s, 14" % (s(sT0), s(sW)))
        a("s_add_u32 %s, %s, %s" % (s(sOB0), s(sOB0), s(sT0)))
    def tail_vector_setup():
        a("v_lshrrev_b32 %s, 4, %s" % (v(vT3), v(vLane)))
        a("v_lshlrev_b32 %s, 1, %s" % (v(vT3), v(vT3)))
        a("v_and_b32 %s, 7, %s" % (v(vWoff), v(vLane)))
        a("v_xor_b32 %s, %s, %s" % (v(vT3), v(vWoff), v(vT3)))
        a("v_lshlrev_b32 %s, 4, %s" % (v(vT3), v(vT3)))
        a("v_lshrrev_b32 %s, 3, %s" % (v(vWoff), v(vLane)))
        a("v_lshl_add_u32 %s, %s, 11, %s" % (v(vWoff), v(vWoff), v(vT3)))
        a("v_and_b32 %s, 3, %s" % (v(vT0), v(vLane)))
        a("v_lshlrev_b32 %s, 3, %s" % (v(vT0), v(vT0)))
        a("v_bfe_u32 %s, %s, 3, 2" % (v(vT1), v(vLane)))
        a("v_lshl_add_u32 %s, %s, 5, %s" % (v(vT0), v(vT1), v(vT0)))
        a("v_lshrrev_b32 %s, 2, %s" % (v(vT1), v(vLane)))
        a("v_lshl_add_u32 %s, %s, 7, %s" % (v(vT0), v(vT1), v(vT0)))
        a("v_add_u32 %s, %s, %s" % (v(vWr), s(sM), v(vT0)))
        for nb in range(1, 4):
            a("v_xor_b32 %s, %d, %s" % (v(vWr + nb), 32 * nb, v(vWr)))
        a("v_lshlrev_b32 %s, 4, %s" % (v(vOo), v(vLane)))

    a("v_lshlrev_b32 %s, 1, %s" % (v(vT2), v(l4)))
    a("v_xor_b32 %s, %s, %s" % (v(vT2), v(l16), v(vT2)))
    a("v_lshlrev_b32 %s, 4, %s" % (v(vT2), v(vT2)))
    a("v_lshl_add_u32 %s, %s, 13, %s" % (v(vW0), v(l4), v(vT2)))
    a("s_lshl_b32 %s, %s, 17" % (s(sT0), s(sQG)))
    a("v_add_u32 %s, %s, %s" % (v(vW0), s(sT0), v(vW0)))
    a("v_xor_b32 %s, 128, %s" % (v(vW1), v(vW0)))
    a("v_and_b32 %s, 7, %s" % (v(vT3), v(vLane)))
    a("v_xor_b32 %s, %s, %s" % (v(vT3), v(vT3), v(l4)))
    a("v_lshlrev_b32 %s, 4, %s" % (v(vT3), v(vT3)))
    a("v_lshrrev_b32 %s, 3, %s" % (v(vX0), v(vLane)))
    a("v_lshl_add_u32 %s, %s, 11, %s" % (v(vX0), v(vX0), v(vT3)))
    a("s_lshl_b32 %s, %s, 16" % (s(sT0), s(sQG)))
    a("v_add_u32 %s, %s, %s" % (v(vX0), s(sT0), v(vX0)))
    a("v_xor_b32 %s, 64, %s" % (v(vX1), v(vX0)))
    a("s_lshl_b32 %s, %s, 12" % (s(sMq), s(sQG)))
    if qrot:
        (bsh, bmul, hsh, hmul) = {1: (0, 2, 0, 4), 2: (1, 4, 1, 8), 3: (2, 8, 1, 8), 4: (1, 4, 0, 4), 5: (0, 2, 1, 8)}[qrot]
        a("s_and_b32 %s, %s, 3" % (s(sT0), s(sH)))
        a("s_lshr_b32 %s, %s, %d" % (s(sT0), s(sT0), hsh))
        a("s_mul_i32 %s, %s, %d" % (s(sT0), s(sT0), hmul))
        a("s_lshr_b32 %s, %s, %d" % (s(sT1), s(sB), bsh))
        a("s_mul_i32 %s, %s, %d" % (s(sT1), s(sT1), bmul))
        a("s_add_u32 %s, %s, %s" % (s(sT0), s(sT0), s(sT1)))
        a("s_and_b32 %s, %s, 15" % (s(sT0), s(sT0)))
        a("s_lshl_b32 %s, %s, 7" % (s(sXo), s(sT0)))
        a("s_lshl_b32 %s, %s, 19" % (s(sWo), s(sT0)))
    else:
        a("s_mov_b32 %s, 0" % s(sXo))
        a("s_mov_b32 %s, 0" % s(sWo))
    a("s_mov_b32 %s, %d" % (s(sIslot), 2 * SLOT))
    a("s_waitcnt lgkmcnt(0)")
    a("s_lshl_b32 %s, %s, 18" % (s(sT0), s(sB)))
    a("s_add_u32 %s, %s, %s" % (s(rX), s(sX), s(sT0)))
    a("s_addc_u32 %s, %s, 0" % (s(rX + 1), s(sX + 1)))
    a("s_mov_b32 %s, 0x40000" % s(rX + 2))
    a("s_mov_b32 %s, 0x20000" % s(rX + 3))
    a("s_lshl_b32 %s, %s, 8" % (s(sT0), s(sH)))
    a("s_add_u32 %s, %s, %s" % (s(rW), s(sWQ), s(sT0)))
    a("s_addc_u32 %s, %s, 0" % (s(rW + 1), s(sWQ + 1)))
    a("s_sub_u32 %s, 0x800000, %s" % (s(rW + 2), s(sT0)))
    a("s_mov_b32 %s, 0x20000" % s(rW + 3))
    def issue_q():
        r = ["s_add_u32 m0, %s, %s" % (s(sIslot), s(sMq)),
             "s_mov_b32 %s, %s" % (s(sT0), s(sXo))]
        for p in range(4):
            r.append("buffer_load_dwordx4 %s, %s, %s offen lds" % (v(vX0 if p % 2 == 0 else vX1), s(rX, 4), s(sT0)))
            if p < 3:
                r.append("s_add_u32 m0, m0, 1024")
                r.append("s_add_u32 %s, %s, 16384" % (s(sT0), s(sT0)))
        r.append("s_add_u32 m0, m0, %d" % (16384 - 3072))
        r.append("s_mov_b32 %s, %s" % (s(sT0), s(sWo)))
        for p in range(4):
            r.append("buffer_load_dwordx4 %s, %s, %s offen lds" % (v(vW0 if p < 2 else vW1), s(rW, 4), s(sT0)))
            if p < 3:
                r.append("s_add_u32 m0, m0, 1024")
                r.append("s_add_u32 %s, %s, 32768" % (s(sT0), s(sT0)))
        r += ["s_add_u32 %s, %s, 128" % (s(sXo), s(sXo)),
              "s_add_u32 %s, %s, 0x80000" % (s(sWo), s(sWo)),
              "s_and_b32 %s, %s, 0x7ff" % (s(sXo), s(sXo)),
              "s_and_b32 %s, %s, 0x7fffff" % (s(sWo), s(sWo)),
              "s_add_u32 %s, %s, %d" % (s(sIslot), s(sIslot), SLOT),
              "s_cmp_ge_u32 %s, %d" % (s(sIslot), SLOT * 3),
              "s_cselect_b32 %s, 0, %s" % (s(sIslot), s(sIslot))]
        return r
    emit(issue_q())
    a("s_lshl_b32 %s, %s, 5" % (s(sT0), s(sB)))
    a("s_add_u32 %s, %s, %s" % (s(sT0), s(sT0), s(sH)))
    a("s_lshr_b32 %s, %s, 13" % (s(sT1), s(sT0)))
    a("s_lshl_b32 %s, %s, 19" % (s(sT0), s(sT0)))
    for (r, p) in ((rK, sKp), (rV, sVp)):
        a("s_add_u32 %s, %s, %s" % (s(r), s(p), s(sT0)))
        a("s_addc_u32 %s, %s, %s" % (s(r + 1), s(p + 1), s(sT1)))
        a("s_mov_b32 %s, 0x80000" % s(r + 2))
        a("s_mov_b32 %s, 0x20000" % s(r + 3))
    a("v_lshl_add_u32 %s, %s, 8, %s" % (v(vVd), v(l4), v(vT2)))
    a("v_xor_b32 %s, 128, %s" % (v(vVd + 1), v(vVd)))
    a("v_xor_b32 %s, %s, %s" % (v(vT3), v(l16), v(l4)))
    a("v_lshlrev_b32 %s, 4, %s" % (v(vT3), v(vT3)))
    a("v_lshl_add_u32 %s, %s, 8, %s" % (v(vKd), v(l4), v(vT3)))
    for c in range(1, 4):
        a("v_xor_b32 %s, %d, %s" % (v(vKd + c), 64 * c, v(vKd)))
    if rot:
        a("s_mul_i32 %s, s2, 5" % s(sKoK))
        a("s_and_b32 %s, %s, 31" % (s(sKoK), s(sKoK)))
        a("s_lshl_b32 %s, %s, 14" % (s(sKoK), s(sKoK)))
    else:
        a("s_mov_b32 %s, 0" % s(sKoK))
    a("s_mov_b32 %s, %s" % (s(sKoV), s(sKoK)))
    tail_scalar_setup()
    tail_vector_setup()
    emit(issue_q())
    a("s_mov_b32 %s, 0" % s(sIt))
    a.label("LA_Lq")
    a("s_waitcnt vmcnt(8)")
    a("s_barrier")
    emit(issue_q())
    a("s_add_u32 %s, %s, 1" % (s(sIt), s(sIt)))
    a("s_cmp_lt_u32 %s, 14" % s(sIt))
    a("s_cbranch_scc1 LA_Lq")
    a("s_cmp_lg_u32 %s, 4" % s(sW))
    a("s_cbranch_scc1 LA_H")

    def Abase(step): e = step % (F // 2); return (112 + 16 * e) if e < 4 else (48 + 16 * (e - 4))
    def Breg(e): e %= D; return (16 + 16 * e) if e < 2 else 240
    vAcc = vO
    def wo_dma(sMx, sWBx, ch, band, sK=None):
        return ["s_add_u32 %s, %s, %d" % (s(sT0), s(sWK0 if sK is None else sK), ch * 32768),
                "s_and_b32 %s, %s, 0xfffff" % (s(sT0), s(sT0)),
                "s_add_u32 m0, %s, %d" % (s(sMx), band * BAND),
                "s_add_u32 %s, %s, %s" % (s(sT0), s(sT0), s(sWBx)),
                "buffer_load_dwordx4 %s, %s, %s offen lds" % (v(vWoff), s(rWO, 4), s(sT0)),
                "s_add_u32 m0, m0, 1024",
                "s_add_u32 %s, %s, 16384" % (s(sT0), s(sT0)),
                "buffer_load_dwordx4 %s, %s, %s offen lds" % (v(vWoff), s(rWO, 4), s(sT0))]
    curhi = {"v": None}
    def rd_chunk(lg, ch, band):
        hi, lo = divmod(band, 4)
        base = vWr
        if hi:
            base = vWrT
            if curhi["v"] != hi:
                for nb in range(4): a("v_add_u32 %s, 0x%x, %s" % (v(vWrT + nb), hi * 65536, v(vWr + nb)))
                curhi["v"] = hi
        for nb in range(4):
            a("ds_read_b64_tr_b16 %s, %s offset:%d" % (v(Abase(ch // 2) + nb * 4 + 2 * (ch % 2), 2), v(base + nb), lo * BAND))
            lg.issue(("A", ch))
    def kv_piece(mat, idx, ldsbase):
        r = []
        g, c = divmod(idx, 4)
        so = sKoK if mat == 0 else sKoV
        if c == 0:
            off = g * 4096 + (16384 if mat else 0)
            if ldsbase[0] == "imm": r.append("s_mov_b32 m0, %d" % (ldsbase[1] + off))
            else: r.append("s_add_u32 m0, %s, %d" % (s(ldsbase[1]), off))
            r.append("s_nop 0")
        r.append("buffer_load_dwordx4 %s, %s, %s offen offset:%d nt lds" % (v(vKd + c if mat == 0 else vVd + (c & 1)), s(rK if mat == 0 else rV, 4), s(so), c * 1024))
        if c == 3:
            r.append("s_add_u32 %s, %s, 4096" % (s(so), s(so)))
            if g == 3: r.append("s_and_b32 %s, %s, 0x7ffff" % (s(so), s(so)))
        return r
    pro = [kv_piece(0, i, ("imm", 0)) for i in range(16)] + \
          [kv_piece(1, i, ("imm", SLOT)) for i in range(16)] + [kv_piece(0, i, ("imm", SLOT)) for i in range(16)]
    a("s_waitcnt vmcnt(8)")
    a("s_barrier")
    for n in range(16): emit(pro[n])
    a("s_waitcnt vmcnt(16)")
    a("s_barrier")
    for n in range(16, 48):
        if n >= W: a("s_waitcnt vmcnt(%d)" % (W - 1))
        emit(pro[n])
        if n == 15 + W: a("s_barrier")
    a("s_mov_b32 %s, %d" % (s(sIslot), 2 * SLOT))
    a("s_mov_b32 %s, 1" % s(sIt))
    RU = [1 + per * k for k in range(4)]
    sNext = sXo
    a("s_cmp_eq_u32 %s, 1" % s(sBad))
    a("s_cselect_b32 %s, 1000, %d" % (s(sNext), RU[0] + 1))
    a.raw(".p2align 6")
    a.label("LA_H0")
    for n in range(32):
        a("s_waitcnt vmcnt(%d)%s" % (W - 1, " lgkmcnt(0)" if n == W - 1 else ""))
        emit(kv_piece(1 if n < 16 else 0, n % 16, ("s", sIslot)))
        if n == W - 1:
            a("s_barrier")
            a("s_cmp_eq_u32 %s, %s" % (s(sIt), s(sNext)))
            a("s_cbranch_scc1 LA_H0x")
            a.label("LA_H0b")
    a("s_add_u32 %s, %s, %d" % (s(sIslot), s(sIslot), SLOT))
    a("s_cmp_ge_u32 %s, %d" % (s(sIslot), SLOT * 3))
    a("s_cselect_b32 %s, 0, %s" % (s(sIslot), s(sIslot)))
    a("s_add_u32 %s, %s, 1" % (s(sIt), s(sIt)))
    a("s_cmp_lt_u32 %s, 31" % s(sIt))
    a("s_cbranch_scc1 LA_H0")
    done30 = False
    for n in range(16):
        a("s_waitcnt vmcnt(%d)" % (W - 1))
        emit(kv_piece(1, n, ("s", sIslot)))
        if n == W - 1:
            a("s_barrier"); done30 = True
    if not done30:
        a("s_waitcnt vmcnt(16)")
        a("s_barrier")
    a("s_waitcnt vmcnt(0)")
    a("s_barrier")
    a("s_branch LA_Hend")
    a.label("LA_H0x")
    dummy = Cnt(a, "lgkmcnt", 15)
    for k in range(4):
        if k < 3:
            a("s_cmp_lg_u32 %s, %d" % (s(sIt), RU[k] + 1))
            a("s_cbranch_scc1 LA_H0x%d" % (k + 1))
        curhi["v"] = None
        for c in range(4): rd_chunk(dummy, 4 * k + c, 6 + c)
        a("s_add_u32 %s, %s, %d" % (s(sNext), s(sNext), per if k < 3 else 1000))
        a("s_branch LA_H0b")
        if k < 3: a.label("LA_H0x%d" % (k + 1))

    a.label("LA_H")
    sMa, sMb, sWBa, sWBb = sXo, sWo, sKoK, sKoV
    a("s_sub_u32 %s, %s, 5" % (s(sT0), s(sW)))
    a("s_lshl_b32 %s, %s, 1" % (s(sT0), s(sT0)))
    a("s_add_u32 %s, %s, 1" % (s(sT1), s(sT0)))
    a("s_lshl_b32 %s, %s, 11" % (s(sMa), s(sT0)))
    a("s_lshl_b32 %s, %s, 11" % (s(sMb), s(sT1)))
    a("s_lshl_b32 %s, %s, 20" % (s(sWBa), s(sT0)))
    a("s_lshl_b32 %s, %s, 20" % (s(sWBb), s(sT1)))
    a("s_add_u32 %s, %s, %s" % (s(sWBa), s(sWBa), s(sNTo)))
    a("s_add_u32 %s, %s, %s" % (s(sWBb), s(sWBb), s(sNTo)))
    a("s_waitcnt vmcnt(8)")
    a("s_barrier")
    a("s_waitcnt vmcnt(0)")
    a("s_barrier")
    a("s_barrier")
    vm = Cnt(a, "vmcnt", 63); lg = Cnt(a, "lgkmcnt", 15)
    LB = [6, 7, 8, 9]
    bandL = {0: 6, 1: 7, 2: 8, 3: 9, 4: 4, 5: 0, 6: 1, 7: 2, 8: 3}
    bandH = {0: 6, 1: 7, 2: 8, 3: 9}
    lbl = [0]
    def late(j):
        emit(wo_dma(sM, sWB, j, bandL[j], sWKH))
        lbl[0] += 1
        a("s_cmp_eq_u32 %s, 7" % s(sW))
        a("s_cbranch_scc1 LA_hs%d" % lbl[0])
        emit(wo_dma(sMa, sWBa, j, bandL[j]))
        emit(wo_dma(sMb, sWBb, j, bandL[j]))
        a("s_branch LA_ht%d" % lbl[0])
        a.label("LA_hs%d" % lbl[0])
        emit(wo_dma(sMa, sWBa, j, bandL[j], sWKH))
        a.label("LA_ht%d" % lbl[0])
    for u in range(32):
        if u == 30 or u in RU: a("s_waitcnt vmcnt(0)")
        a("s_waitcnt lgkmcnt(0)")
        a("s_barrier")
        if u in RU:
            k = RU.index(u)
            curhi["v"] = None
            lbl[0] += 1
            a("s_cmp_eq_u32 %s, 1" % s(sBad))
            a("s_cbranch_scc1 LA_hs%d" % lbl[0])
            for c in range(4): rd_chunk(lg, 4 * k + c, 6 + c)
            a.label("LA_hs%d" % lbl[0])
        if u - 1 in RU:
            k = RU.index(u - 1) + 1
            lbl[0] += 1
            a("s_cmp_eq_u32 %s, 1" % s(sBad))
            a("s_cbranch_scc1 LA_hs%d" % lbl[0])
            for c in range(4): emit(wo_dma(sM, sWB, 4 * k + c, 6 + c))
            a("s_cmp_lg_u32 %s, 7" % s(sW))
            a("s_cbranch_scc1 LA_hs%d" % lbl[0])
            for c in range(4): emit(wo_dma(sMa, sWBa, 4 * k + c, 6 + c))
            a.label("LA_hs%d" % lbl[0])
        if u == 29: late(4)
        if u == 30: late(5); late(6)
        if u == 31: late(7); late(8)
    for c in range(4): bandH[16 + c] = 6 + c
    for j in range(4, 9): bandH[16 + j] = bandL[j]
    own_dma = 25
    a.label("LA_Hend")
    stamp(1); stamp(2)
    if prioH: a("s_setprio %d" % prioH)
    a("s_cmp_eq_u32 %s, 1" % s(sBad))
    a("s_cbranch_scc1 LA_tailL")
    nH_dma = own_dma
    for i in range(64):
        a("v_mov_b32 %s, 0" % v(vAcc + i))
    a("s_waitcnt vmcnt(0)")
    a("s_barrier")
    a("s_branch LA_tailH")

    a.label("LA_C")
    a("s_waitcnt lgkmcnt(0)")
    tail_scalar_setup()
    a("s_cmp_lg_u32 %s, 0" % s(sW))
    a("s_cbranch_scc1 LA_noinit")
    a("s_lshl_b32 %s, %s, 3" % (s(sT0), s(sB)))
    a("s_lshr_b32 %s, %s, 2" % (s(sT1), s(sH)))
    a("s_add_u32 %s, %s, %s" % (s(sT0), s(sT0), s(sT1)))
    a("s_lshl_b32 %s, %s, 2" % (s(sT2), s(sT0)))
    a("s_mul_i32 %s, %s, %d" % (s(sT0), s(sT0), FLAG_STRIDE))
    a("s_and_b32 %s, %s, 3" % (s(sT1), s(sH)))
    a("s_lshl_b32 %s, %s, 2" % (s(sT1), s(sT1)))
    a("s_add_u32 %s, %s, %s" % (s(sT0), s(sT0), s(sT1)))
    a("s_add_u32 %s, %s, 0x%x" % (s(sMq), s(sT0), FLAG_OFF))
    a("v_mov_b32 %s, 0" % v(vT2))
    a("v_mov_b32 %s, 1" % v(vT3))
    a("s_mov_b64 exec, 1")
    a("buffer_store_dword %s, %s, %s, %s offen sc1" % (v(vT2), v(vT2), s(rO, 4), s(sMq)))
    a("s_waitcnt vmcnt(0)")
    a("buffer_atomic_add %s, %s, %s, %s offen sc1" % (v(vT3), v(vT2), s(rD, 4), s(sT2)))
    a("s_mov_b64 exec, -1")
    a("s_nop 1")
    a.label("LA_noinit")
    vEW = 12
    a("v_lshlrev_b32 %s, 1, %s" % (v(vT3), v(l4)))
    a("v_and_b32 %s, 7, %s" % (v(vEW), v(vLane)))
    a("v_xor_b32 %s, %s, %s" % (v(vT3), v(vEW), v(vT3)))
    a("v_lshlrev_b32 %s, 4, %s" % (v(vT3), v(vT3)))
    a("v_lshrrev_b32 %s, 3, %s" % (v(vEW), v(vLane)))
    a("v_lshl_add_u32 %s, %s, 11, %s" % (v(vEW), v(vEW), v(vT3)))
    a("s_lshr_b32 %s, s2, 3" % s(sXo))
    a("s_and_b32 %s, %s, %d" % (s(sXo), s(sXo), bmask))
    a("s_add_u32 %s, %s, %d" % (s(sXo), s(sXo), b0))
    a("v_xor_b32 %s, %s, %s" % (v(vT3), v(l4), v(l16)))
    a("v_lshlrev_b32 %s, 4, %s" % (v(vT3), v(vT3)))
    a("v_lshl_add_u32 %s, %s, 8, %s" % (v(vKb), v(l16), v(vT3)))
    a("v_and_b32 %s, 3, %s" % (v(vT2), v(vLane)))
    a("v_lshlrev_b32 %s, 3, %s" % (v(vT2), v(vT2)))
    a("v_add_u32 %s, 16384, %s" % (v(vT2), v(vT2)))
    a("v_bfe_u32 %s, %s, 2, 3" % (v(vT3), v(vLane)))
    a("v_lshl_add_u32 %s, %s, 5, %s" % (v(vT2), v(vT3), v(vT2)))
    a("v_lshrrev_b32 %s, 2, %s" % (v(vT3), v(vLane)))
    a("v_lshl_add_u32 %s, %s, 8, %s" % (v(vVb), v(vT3), v(vT2)))
    a("v_bfe_u32 %s, %s, 2, 2" % (v(vT3), v(vLane)))
    a("v_lshl_add_u32 %s, %s, 3, %s" % (v(vT3), v(l4), v(vT3)))
    a("v_lshl_add_u32 %s, %s, 8, %s" % (v(vWb), v(vT3), v(vT2)))
    a("v_bfe_u32 %s, %s, 1, 3" % (v(vT3), v(vLane)))
    a("v_xor_b32 %s, %s, %s" % (v(vT3), v(l4), v(vT3)))
    a("v_lshlrev_b32 %s, 4, %s" % (v(vT3), v(vT3)))
    a("v_lshl_add_u32 %s, %s, 7, %s" % (v(vXb), v(l16), v(vT3)))
    a("s_lshl_b32 %s, %s, 12" % (s(sT0), s(sQG)))
    a("v_add_u32 %s, %s, %s" % (v(vXb), s(sT0), v(vXb)))
    vQa = vO
    def xf(ks, qb): return vKf + (2 * ks + qb) * 4
    def wf(G, i): return (vVf if G < 2 else vS0) + ((G % 2) * 4 + i) * 4
    for i in range(64): a("v_mov_b32 %s, 0" % v(vQa + i))
    for i in range(8): a("v_mov_b32 %s, 0" % v(xf(1, 0) + i))
    for i in range(32): a("v_mov_b32 %s, 0" % v(vS0 + i))
    for i in range(8): a("v_mov_b32 %s, 0" % v(vNM + i))
    a("v_mov_b32 %s, 0" % v(vL0))
    a("v_mov_b32 %s, 0" % v(vL1))
    a("s_mov_b32 %s, 0x%08x" % (s(sThr), f2u(-1.0)))
    a("s_mov_b32 %s, 0xff800000" % s(sDmin))
    a("s_mov_b32 %s, 0x%08x" % (s(sC), f2u(CSCALE)))
    vXa, vWa = vPb + 8, vPb
    def qreads(G):
        ks, hh = divmod(G, 2)
        r = []
        if hh == 0:
            for qb in range(2):
                r.append("ds_read_b128 %s, %s offset:%d" % (v(xf(ks, qb), 4), v(vXa + ks), qb * 2048))
        for i in range(4):
            for j in range(2):
                r.append("ds_read_b64_tr_b16 %s, %s offset:%d" % (v(wf(G, i) + 2 * j, 2), v(vWa + 4 * hh + i), ks * 8192 + j * 1024))
        return r
    def qm(G, i, qb):
        ks, hh = divmod(G, 2)
        d = vQa + (2 * (4 * hh + i) + qb) * 4
        return mfma(d, wf(G, i), xf(ks, qb), d)
    def qaddr():
        r = ["v_add_u32 %s, %s, %s" % (v(vXa), s(sCslot), v(vXb)),
             "v_add_u32 %s, %s, %s" % (v(vWa), s(sCslot), v(vWb))]
        for i in range(1, 8):
            r.append("v_xor_b32 %s, %d, %s" % (v(vWa + i), 32 * i, v(vWa)))
        r.append("v_xor_b32 %s, 64, %s" % (v(vXa + 1), v(vXa)))
        r += ["s_add_u32 %s, %s, %d" % (s(sCslot), s(sCslot), SLOT),
              "s_cmp_ge_u32 %s, %d" % (s(sCslot), SLOT * 3),
              "s_cselect_b32 %s, 0, %s" % (s(sCslot), s(sCslot))]
        return r
    def group(Gm, Gr, pre=None, post=None):
        rd = qreads(Gr)
        ms = [qm(Gm, i, qb) for i in range(4) for qb in range(2)]
        r = list(pre or [])
        post = list(post or [])
        nper = 2 if post else (len(rd) + 6) // 7
        p = 0
        for k in range(8):
            r.extend(rd[p:p + nper]); p += nper
            if p >= len(rd) + nper and post:
                r.extend(post[:4]); post = post[4:]
            r.append(ms[k])
        r.extend(post)
        return r
    a("s_mov_b32 %s, %d" % (s(sCslot), 2 * SLOT))
    a("s_mov_b32 %s, 0" % s(sIt))
    emit(qaddr())
    a.raw(".p2align 6")
    a.label("LA_Cq")
    a("s_waitcnt lgkmcnt(0)")
    a("s_barrier")
    emit(group(2, 0))
    emit(group(3, 1))
    a("s_cmp_eq_u32 %s, %s" % (s(sIt), s(sXo)))
    a("s_cbranch_scc1 LA_side")
    a.label("LA_sideb")
    emit(group(0, 2, pre=["s_waitcnt lgkmcnt(8)"]))
    emit(group(1, 3, pre=["s_waitcnt lgkmcnt(10)"], post=qaddr()))
    a("s_add_u32 %s, %s, 1" % (s(sIt), s(sIt)))
    a("s_cmp_lt_u32 %s, 16" % s(sIt))
    a("s_cbranch_scc1 LA_Cq")
    a("s_waitcnt lgkmcnt(0)")
    emit([qm(G, i, qb) for G in (2, 3) for i in range(4) for qb in range(2)])
    def kaddr(base_expr):
        r = [base_expr]
        for ks in range(1, 4): r.append("v_xor_b32 %s, %d, %s" % (v(vP + ks), 64 * ks, v(vP)))
        return r
    def kread(f, half):
        ks, kb = divmod(f, 2)
        return "ds_read_b128 %s, %s offset:%d" % (v(vKf + 4 * f, 4), v(vP + ks), half * 8192 + kb * 4096)
    emit(kaddr("v_mov_b32 %s, %s" % (v(vP), v(vKb))))
    a("s_waitcnt vmcnt(0)")
    a("s_barrier")
    for f in range(8): a(kread(f, 0))
    for ks in range(4):
        for qb in range(2):
            for e in range(2):
                src = vQa + (2 * (2 * ks + e) + qb) * 4
                for i in range(4): a("v_mul_f32 %s, %s, %s" % (v(src + i), s(sC), v(src + i)))
                for d_ in range(2):
                    a("v_cvt_pk_bf16_f32 %s, %s, %s" % (v(vQ + (2 * ks + qb) * 4 + 2 * e + d_), v(src + 2 * d_), v(src + 2 * d_ + 1)))
    a("s_nop 1")
    for fr in range(8):
        for d_ in range(2):
            a("v_permlane32_swap_b32 %s, %s" % (v(vQ + 4 * fr + d_), v(vQ + 4 * fr + 2 + d_)))
    a("s_nop 1")
    for fr in range(8):
        for d_ in range(2):
            a("v_permlane16_swap_b32 %s, %s" % (v(vQ + 4 * fr + d_), v(vQ + 4 * fr + 2 + d_)))
    stamp(1)
    def qkm(f, qb, S):
        ks, kb = divmod(f, 2)
        d = S + 8 * qb + 4 * kb
        return mfma(d, vKf + 4 * f, vQ + (2 * ks + qb) * 4, vNM + 4 * qb if ks == 0 else d)
    a("s_waitcnt lgkmcnt(0)")
    a("s_nop 1")
    for f in range(8):
        for qb in range(2):
            a(qkm(f, qb, vS0))
            for i in range(4): a("v_mov_b32 %s, 0" % v(vO + 8 * f + 4 * qb + i))
    for f in range(8): a(kread(f, 1))
    a("s_mov_b32 %s, %d" % (s(sCslot), SLOT))
    a("s_mov_b32 %s, 0" % s(sIt))

    def vread(n, half):
        db, j = divmod(n, 2)
        return "ds_read_b64_tr_b16 %s, %s offset:%d" % (v(vVf + db * 4 + 2 * j, 2), v(vVa + db), half * 8192 + j * 4096)
    def ex(j, S): return "v_exp_f32 %s, %s" % (v(vP + j), v(S + j))
    def cvt(j): return "v_cvt_pk_bf16_f32 %s, %s, %s" % (v(vPb + j), v(vP + 2 * j), v(vP + 2 * j + 1))
    def adds(g):
        t = vTs if g < 4 else vTs2
        if g % 4 == 0: return ["v_add_f32 %s, %s, %s" % (v(t), v(vP + 2 * g), v(vP + 2 * g + 1))]
        return ["v_add_f32 %s, %s, %s" % (v(t), v(vP + 2 * g), v(t)), "v_add_f32 %s, %s, %s" % (v(t), v(vP + 2 * g + 1), v(t))]
    def phaseX(Scur, Snext, half, tag):
        for f in range(8):
            ad = adds(f - 1) if f > 0 else []
            a(qkm(f, 0, Snext))
            a(ex(2 * f, Scur))
            if ad: a(ad[0])
            a(vread(2 * f, half))
            a(qkm(f, 1, Snext))
            a(ex(2 * f + 1, Scur))
            if len(ad) > 1: a(ad[1])
            if f > 0: a(cvt(f - 1))
            a(vread(2 * f + 1, half))
        emit(adds(7)); a(cvt(7))
        a("v_max_f32 %s, %s, %s" % (v(vT0), v(vTs2), v(vTs)))
        a("v_cmp_lt_f32 vcc, %s, %s" % (s(sThr), v(vT0)))
        a("s_cbranch_vccnz LA_rare%s" % tag)
        a.label("LA_back%s" % tag)
        a("v_add_f32 %s, %s, %s" % (v(vL0), v(vTs), v(vL0)))
        a("v_add_f32 %s, %s, %s" % (v(vL1), v(vTs2), v(vL1)))
    def phaseY(half, extra=None):
        emit(kaddr("v_add_u32 %s, %s, %s" % (v(vP), s(sCslot), v(vKb))))
        extra = list(extra or [])
        for db in range(8):
            a("s_waitcnt lgkmcnt(%d)" % (14 - 2 * db + min(db, 4) * 2 if db < 4 else 8 if db == 4 else 15) if False else "s_nop 0") if False else None
            if db == 0: a("s_waitcnt lgkmcnt(8)")
            if db == 4: a("s_waitcnt lgkmcnt(8)")
            for qb in range(2):
                d = vO + (2 * db + qb) * 4
                a(mfma(d, vVf + 4 * db, vPb + 4 * qb, d))
                if db < 4: a(kread(2 * db + qb, half))
                elif extra:
                    emit(extra[:2]); extra = extra[2:]
        assert not extra
    def vaddr():
        r = ["v_add_u32 %s, %s, %s" % (v(vVa), s(sCslot), v(vVb))]
        for i in range(1, 8): r.append("v_xor_b32 %s, %d, %s" % (v(vVa + i), 32 * i, v(vVa)))
        return r
    emit(vaddr())
    a.raw(".p2align 6")
    a.label("LA_loop")
    a("s_waitcnt lgkmcnt(0)")
    a("s_barrier")
    phaseX(vS0, vS1, 0, "0")
    phaseY(0)
    a("s_waitcnt lgkmcnt(0)")
    phaseX(vS1, vS0, 1, "1")
    phaseY(1, extra=["s_add_u32 %s, %s, %d" % (s(sCslot), s(sCslot), SLOT),
                     "s_cmp_ge_u32 %s, %d" % (s(sCslot), SLOT * 3),
                     "s_cselect_b32 %s, 0, %s" % (s(sCslot), s(sCslot))] + vaddr() +
                    ["s_add_u32 %s, %s, 1" % (s(sIt), s(sIt)), "s_cmp_lt_u32 %s, 32" % s(sIt)])
    a("s_cbranch_scc1 LA_loop")
    stamp(2)
    def xreduce(regs, op):
        for swap in ("v_permlane32_swap_b32", "v_permlane16_swap_b32"):
            for r_, t_ in zip(regs, (vT0, vT1)): a("v_mov_b32 %s, %s" % (v(t_), v(r_)))
            a("s_nop 1")
            for r_, t_ in zip(regs, (vT0, vT1)): a("%s %s, %s" % (swap, v(r_), v(t_)))
            a("s_nop 0")
            for r_, t_ in zip(regs, (vT0, vT1)): a("%s %s, %s, %s" % (op, v(r_), v(r_), v(t_)))
    xreduce((vL0, vL1), "v_add_f32")
    a("v_rcp_f32 %s, %s" % (v(vT2), v(vL0)))
    a("v_rcp_f32 %s, %s" % (v(vT3), v(vL1)))
    a("s_lshl_b32 %s, %s, 2" % (s(sT2), s(sB)))
    a("s_add_u32 %s, %s, %s" % (s(sT2), s(sT2), s(sQG)))
    a("s_lshl_b32 %s, %s, 6" % (s(sT2), s(sT2)))
    a("s_add_u32 %s, %s, %s" % (s(sT2), s(sT2), s(sH)))
    a("s_lshl_b32 %s, %s, 12" % (s(sT2), s(sT2)))
    a("s_add_u32 %s, %s, 0x20000" % (s(sT1), s(sT2)))
    a("v_lshlrev_b32 %s, 4, %s" % (v(vOo), v(vLane)))
    vOb = 48
    for m in range(4):
        for qb in range(2):
            dst = vOb + (2 * m + qb) * 4
            for e in range(2):
                src = vO + (2 * (2 * m + e) + qb) * 4
                for i in range(4): a("v_mul_f32 %s, %s, %s" % (v(src + i), v(vT2 + qb), v(src + i)))
                for d_ in range(2):
                    a("v_cvt_pk_bf16_f32 %s, %s, %s" % (v(dst + 2 * e + d_), v(src + 2 * d_), v(src + 2 * d_ + 1)))
            a("buffer_store_dwordx4 %s, %s, %s, %s offen offset:%d sc1" % (v(dst, 4), v(vOo), s(rO, 4), s(sT2 if qb == 0 else sT1), m * 1024))
    tail_vector_setup()
    a("s_waitcnt lgkmcnt(0)")
    a.label("LA_tailL")
    lgL = Cnt(a, "lgkmcnt", 15)
    curhi["v"] = None
    for ch in range(5): rd_chunk(lgL, ch, bandL[ch])
    for i in range(64):
        a("v_mov_b32 %s, 0" % v(vAcc + i))
    a("s_waitcnt vmcnt(0) lgkmcnt(0)")
    a("s_barrier")
    a("s_cmp_lg_u32 %s, 0" % s(sW))
    a("s_cbranch_scc1 LA_noflag")
    a("v_mov_b32 %s, 0" % v(vT0))
    a("v_mov_b32 %s, 1" % v(vT1))
    a("s_mov_b64 exec, 1")
    a("buffer_store_dword %s, %s, %s, %s offen sc1" % (v(vT1), v(vT0), s(rO, 4), s(sMq)))
    a("s_mov_b64 exec, -1")
    a.label("LA_noflag")

    def tail(tag, nread, ndma, band_of, free_bands):
        vm = Cnt(a, "vmcnt", 63); lg = Cnt(a, "lgkmcnt", 15)
        curhi["v"] = None
        band_of = dict(band_of)
        st = {"dma": ndma}
        def dma(band):
            ch = st["dma"]
            if ch >= 32: return
            st["dma"] += 1
            band_of[ch] = band
            emit(wo_dma(sM, sWB, ch, band))
            vm.issue(("W", ch)); vm.issue(("W", ch))
        stamp(3)
        a("v_mov_b32 %s, 0" % v(vT0))
        a("s_lshr_b32 %s, %s, 1" % (s(sT2), s(sQT)))
        a("s_lshl_b32 %s, %s, 3" % (s(sT2), s(sT2)))
        a("s_add_u32 %s, %s, %s" % (s(sT2), s(sT2), s(sW)))
        a("s_lshl_b32 %s, %s, 2" % (s(sLim), s(sT2)))
        a("s_mul_i32 %s, %s, %d" % (s(sE), s(sT2), FLAG_STRIDE))
        a("s_add_u32 %s, %s, 0x%x" % (s(sE), s(sE), FLAG_OFF))
        a("buffer_load_dword %s, %s, %s, %s offen sc1" % (v(vT2), v(vT0), s(rD, 4), s(sLim))); vm.issue("init")
        for b in free_bands: dma(b)
        pend = []
        while nread < F:
            vm.wait(("W", nread))
            rd_chunk(lg, nread, band_of[nread])
            pend.append(nread)
            if len(pend) > 1:
                p = pend.pop(0)
                lg.wait(("A", p))
                dma(band_of[p])
            nread += 1
        for p in pend:
            lg.wait(("A", p)); dma(band_of[p])
        pend = []
        vm.wait("init")
        stamp(4)
        a("s_mov_b32 %s, 0" % s(sSpin))
        a.label("LA_init%s" % tag)
        a("v_readfirstlane_b32 %s, %s" % (s(sT0), v(vT2)))
        a("s_add_u32 %s, %s, 1" % (s(sSpin), s(sSpin)))
        a("s_cmp_eq_u32 %s, 4" % s(sT0))
        a("s_cbranch_scc1 LA_poll%s" % tag)
        a("s_cmp_ge_u32 %s, %d" % (s(sSpin), SPIN_MAX))
        a("s_cbranch_scc1 LA_poll%s" % tag)
        a("s_sleep 8")
        a("buffer_load_dword %s, %s, %s, %s offen sc1" % (v(vT2), v(vT0), s(rD, 4), s(sLim)))
        a("s_waitcnt vmcnt(0)")
        a("s_branch LA_init%s" % tag)
        vF = Breg(0)
        a.label("LA_poll%s" % tag)
        a("buffer_load_dwordx4 %s, %s, %s, %s offen sc1" % (v(vF, 4), v(vT0), s(rO, 4), s(sE)))
        a("s_add_u32 %s, %s, 1" % (s(sSpin), s(sSpin)))
        a("s_waitcnt vmcnt(0)")
        a("v_and_b32 %s, %s, %s" % (v(vF), v(vF), v(vF + 1)))
        a("v_and_b32 %s, %s, %s" % (v(vF + 2), v(vF + 2), v(vF + 3)))
        a("v_and_b32 %s, %s, %s" % (v(vF), v(vF), v(vF + 2)))
        a("s_nop 0")
        a("v_readfirstlane_b32 %s, %s" % (s(sT0), v(vF)))
        a("s_cmp_eq_u32 %s, 1" % s(sT0))
        a("s_cbranch_scc1 LA_go%s" % tag)
        a("s_cmp_ge_u32 %s, %d" % (s(sSpin), SPIN_MAX))
        a("s_cbranch_scc1 LA_go%s" % tag)
        a("s_sleep 4")
        a("s_branch LA_poll%s" % tag)
        a.label("LA_go%s" % tag)
        vm.drain(False)
        stamp(5)
        def oload(i, u):
            if i >= 16: return
            if u == 0: a("s_add_u32 %s, %s, %s" % (s(sT1), s(sOB0), s(sOK)))
            else: a("s_add_u32 %s, %s, 0x20000" % (s(sT1), s(sT1)))
            a("buffer_load_dwordx4 %s, %s, %s, %s offen sc1" % (v(Breg(i) + 4 * u, 4), v(vOo), s(rO, 4), s(sT1))); vm.issue(("O", i, u))
            if u == 3:
                a("s_add_u32 %s, %s, 1024" % (s(sOK), s(sOK)))
                a("s_and_b32 %s, %s, 0x3fff" % (s(sOK), s(sOK)))
        for i in range(D):
            for u in range(4): oload(i, u)
        for i in range(16):
            lg.wait(("A", 2 * i + 1))
            for u in range(4):
                vm.wait(("O", i, u))
                for nb in range(4):
                    acc = vAcc + (u * 4 + nb) * 4
                    a(mfma(acc, Abase(i) + nb * 4, Breg(i) + u * 4, acc))
                oload(i + D, u)
            for p in pend:
                lg.wait(("A", p)); dma(band_of[p])
            pend = []
            for ch in (2 * i + F, 2 * i + F + 1):
                if ch < 32:
                    vm.wait(("W", ch))
                    rd_chunk(lg, ch, band_of[ch])
                    pend.append(ch)
        stamp(6)
    tail("L", 5, 9, bandL, [6, 7, 8, 9, 4, 5])
    a("s_branch LA_red")
    a.label("LA_tailH")
    tail("H", F, nH_dma, bandH, [5])
    a.label("LA_red")
    a("v_and_b32 %s, 7, %s" % (v(vT0), v(vLane)))
    a("v_lshrrev_b32 %s, 4, %s" % (v(vT1), v(vLane)))
    a("v_xor_b32 %s, %s, %s" % (v(vT1), v(vT1), v(vT0)))
    a("v_lshlrev_b32 %s, 4, %s" % (v(vT1), v(vT1)))
    a("v_lshl_add_u32 %s, %s, 8, %s" % (v(vT1), v(vT0), v(vT1)))
    a("v_bfe_u32 %s, %s, 3, 1" % (v(vT2), v(vLane)))
    a("v_lshl_add_u32 %s, %s, 14, %s" % (v(vT1), v(vT2), v(vT1)))
    wa = 16
    a("v_add_u32 %s, %s, %s" % (v(wa), s(sM), v(vT1)))
    a("v_xor_b32 %s, 64, %s" % (v(wa + 1), v(wa)))
    a("v_add_u32 %s, 0x10000, %s" % (v(wa + 2), v(wa)))
    a("v_add_u32 %s, 0x10000, %s" % (v(wa + 3), v(wa + 1)))
    a("v_lshrrev_b32 %s, 3, %s" % (v(vT2), v(vLane)))
    a("v_lshlrev_b32 %s, 1, %s" % (v(vT3), v(vT0)))
    a("v_xor_b32 %s, %s, %s" % (v(vT3), v(vT3), v(vT2)))
    a("v_lshlrev_b32 %s, 4, %s" % (v(vT3), v(vT3)))
    a("v_lshl_add_u32 %s, %s, 8, %s" % (v(vT3), v(vT2), v(vT3)))
    a("s_lshl_b32 %s, %s, 14" % (s(sT0), s(sW)))
    a("v_add_u32 %s, %s, %s" % (v(vT3), s(sT0), v(vT3)))
    a("v_xor_b32 %s, 16, %s" % (v(vT1), v(vT3)))
    a("v_lshlrev_b32 %s, 11, %s" % (v(vT2), v(vT2)))
    a("v_lshl_add_u32 %s, %s, 4, %s" % (v(vT2), v(vT0), v(vT2)))
    a("s_lshl_b32 %s, %s, 17" % (s(sT1), s(sQT)))
    a("s_add_u32 %s, %s, %s" % (s(sT0), s(sT0), s(sT1)))
    a("s_add_u32 %s, %s, %s" % (s(sT0), s(sT0), s(sNTo)))
    for u in range(4):
        for nb in range(4):
            a("ds_write_b128 %s, %s offset:%d" % (v(wa + 2 * (u // 2) + (nb % 2)), v(vAcc + (u * 4 + nb) * 4, 4), (u % 2) * 2 * BAND + (nb // 2) * 128))
    a("s_waitcnt lgkmcnt(0)")
    a("s_barrier")
    vR = 48
    for p in range(8):
        a("ds_read_b128 %s, %s offset:%d" % (v(vR + p * 8, 4), v(vT3), p * 2048))
        a("ds_read_b128 %s, %s offset:%d" % (v(vR + p * 8 + 4, 4), v(vT1), p * 2048))
    for p in range(1, 8):
        a("s_waitcnt lgkmcnt(%d)" % (14 - 2 * p))
        for i in range(8):
            a("v_add_f32 %s, %s, %s" % (v(vR + i), v(vR + p * 8 + i), v(vR + i)))
    for i in range(4):
        a("v_cvt_pk_bf16_f32 %s, %s, %s" % (v(24 + i), v(vR + 2 * i), v(vR + 2 * i + 1)))
    a("buffer_store_dwordx4 %s, %s, %s, %s offen" % (v(24, 4), v(vT2), s(rOut, 4), s(sT0)))
    if ts:
        a("s_waitcnt vmcnt(0)")
        stamp(7)
        a("s_waitcnt lgkmcnt(0)")
        for i in range(8): a("v_mov_b32 v%d, %s" % (24 + i, s(sTS + 2 * i)))
        a("s_lshl_b32 %s, s2, 8" % s(sT0))
        a("s_lshl_b32 %s, %s, 5" % (s(sT1), s(sW)))
        a("s_add_u32 %s, %s, %s" % (s(sT0), s(sT0), s(sT1)))
        a("s_add_u32 %s, %s, 0x1000000" % (s(sT0), s(sT0)))
        a("v_mov_b32 v8, 0")
        a("buffer_store_dwordx4 v[24:27], v8, %s, %s offen" % (s(rO, 4), s(sT0)))
        a("buffer_store_dwordx4 v[28:31], v8, %s, %s offen offset:16" % (s(rO, 4), s(sT0)))
    a.label("LA_end")
    a("s_endpgm")
    a.label("LA_side")
    for hw in range(2):
        a("s_add_u32 %s, %s, %s" % (s(sT0), s(sWB), s(sWK0)))
        if hw: a("s_add_u32 %s, %s, 0x400000" % (s(sT0), s(sT0)))
        for ch in range(4):
            for hp in range(2):
                a("s_add_u32 m0, %s, %d" % (s(sM), (6 + ch) * BAND + hw * 8192 + hp * 1024))
                if ch + hp: a("s_add_u32 %s, %s, 16384" % (s(sT0), s(sT0)))
                else: a("s_nop 0")
                a("buffer_load_dwordx4 %s, %s, %s offen lds" % (v(vEW), s(rWO, 4), s(sT0)))
    a("s_branch LA_sideb")
    for tag, Sc, Sn in (("0", vS0, vS1), ("1", vS1, vS0)):
        a.label("LA_rare%s" % tag)
        for qb, t in ((0, vTs), (1, vTs2)):
            b_ = Sc + 8 * qb
            a("v_max3_f32 %s, %s, %s, %s" % (v(t), v(b_), v(b_ + 1), v(b_ + 2)))
            a("v_max3_f32 %s, %s, %s, %s" % (v(t), v(t), v(b_ + 3), v(b_ + 4)))
            a("v_max3_f32 %s, %s, %s, %s" % (v(t), v(t), v(b_ + 5), v(b_ + 6)))
            a("v_max_f32 %s, %s, %s" % (v(t), v(t), v(b_ + 7)))
        xreduce((vTs, vTs2), "v_max_f32")
        for qb, t in ((0, vTs), (1, vTs2)):
            al = vT2 + qb
            a("v_max_f32 %s, %s, %s" % (v(t), s(sDmin), v(t)))
            a("v_max_f32 %s, 0, %s" % (v(al), v(t)))
            a("v_sub_f32 %s, 0, %s" % (v(al), v(al)))
            a("v_exp_f32 %s, %s" % (v(al), v(al)))
        for qb, t in ((0, vTs), (1, vTs2)):
            for j in range(4): a("v_sub_f32 %s, %s, %s" % (v(vNM + 4 * qb + j), v(vNM + 4 * qb + j), v(t)))
            for j in range(8):
                a("v_sub_f32 %s, %s, %s" % (v(Sc + 8 * qb + j), v(Sc + 8 * qb + j), v(t)))
                a("v_sub_f32 %s, %s, %s" % (v(Sn + 8 * qb + j), v(Sn + 8 * qb + j), v(t)))
        for i in range(64):
            a("v_mul_f32 %s, %s, %s" % (v(vO + i), v(vT2 + ((i // 4) % 2)), v(vO + i)))
        a("v_mul_f32 %s, %s, %s" % (v(vL0), v(vT2), v(vL0)))
        a("v_mul_f32 %s, %s, %s" % (v(vL1), v(vT3), v(vL1)))
        for j in range(16): a(ex(j, Sc))
        a("s_nop 0")
        for g in range(8):
            emit(adds(g)); a(cvt(g))
        a("s_mov_b32 %s, 0x%08x" % (s(sThr), f2u(THR)))
        a("s_mov_b32 %s, 0" % s(sDmin))
        a("s_branch LA_back%s" % tag)
    return NV, NS

def main(out, **kw):
    a = Asm()
    NA = "standalone__mha_block_cached__near_ridge_kernel"
    a.raw("; @launch grid=(256,1,1) block=(512,1,1) lds=163840")
    a.raw('.amdgcn_target "amdgcn-amd-amdhsa--gfx950"')
    a.raw(".text")
    nv, ns = gen(a, NA, **kw)
    a.raw('.section .rodata,"a"')
    kernel_desc(a, NA, nv, ns)
    open(out, "w").write(a.text())

if __name__ == "__main__":
    main("k14.s")
    main("k14_ts.s", ts=1)
    main("k14_all_ts.s", ts=1, allbad=True)
```

```python
import sys, struct
from gen1 import Asm, v, s, f2u, kernel_header, kernel_desc
from gen5 import Cnt

SLOT = 32768
BAND = 16384
CSCALE = 1.4426950408889634 / (128 ** 0.5)
THR = 4096.0
FLAG_OFF = 0x800000
FLAG_STRIDE = 4352
SPIN_MAX = 1 << 18
MF = "v_mfma_f32_16x16x32_bf16"

def gen(a, name, rot=True, qrot=3, ts=0, tmap="8x4", orot=3, W=22, warm=0, lock=True, ru0=2, b0=6, bmask=7, per=5, prioH=0, bad=True, allbad=False, lastb=None, cprio=0, qsched=0, pk=False, pvord=0):
    perm = (lambda c: c) if tmap == "8x4" else (lambda c: (c // 4) * 8 + c % 4 if c < 16 else ((c - 16) // 4) * 8 + 4 + c % 4)
    F, D = 16, 3
    kernel_header(a, name)
    sX, sKp, sVp, sWQ = 4, 6, 8, 10
    sWO, sOUT, sDBG, sWS = 12, 14, 16, 18
    rK, rV, rX, rW, rO = 20, 24, 28, 32, 36
    sW, sQG, sB, sH = 40, 41, 43, 44
    sT0, sT1, sT2 = 45, 46, 47
    sIslot, sCslot, sIt = 48, 49, 50
    sXo, sWo, sKoK, sKoV = 51, 52, 53, 42
    sM, sMq = 54, 55
    sThr, sDmin, sC = 56, 57, 58
    sE, sLim, sNTo = 59, 61, 60
    sQT, sNT, sWB, sWK0 = 62, 63, 64, 66
    sOB0, sOK, sSpin = 67, 69, 70
    sBad, sWKH = 65, 68
    sG = 4
    rWO, rD, rOut = 72, 76, 80
    sTS = 84
    NS = 100
    vLane, vT0, vT1, vT2, vT3 = 1, 2, 3, 4, 5
    vKb, vVb, vL0, vL1, vTs, vTs2 = 6, 7, 8, 9, 10, 11
    vXb, vWb = 10, 11
    vQ, vNM, vVa, vS0, vS1, vP, vKf, vVf, vO, vPb = 16, 48, 56, 64, 80, 96, 112, 144, 176, 240
    vWoff, vOo = 6, 7
    vWr = 8
    vWrT = 12
    vX0, vX1, vW0, vW1 = 16, 17, 18, 19
    vKd, vVd = 20, 24
    NV = 256
    def emit(lst):
        for x in lst:
            if isinstance(x, list): emit(x)
            else: a(x)
    def stamp(i):
        if ts: a("s_memrealtime %s" % s(sTS + 2 * i, 2))
    def srd(r, lo, hi, sz):
        a("s_mov_b32 %s, %s" % (s(r), lo)); a("s_mov_b32 %s, %s" % (s(r + 1), hi))
        a("s_mov_b32 %s, %s" % (s(r + 2), sz)); a("s_mov_b32 %s, 0x20000" % s(r + 3))
    def mfma(d, x, y, c): return "%s %s, %s, %s, %s" % (MF, v(d, 4), v(x, 4), v(y, 4), v(c, 4))

    a("s_cmp_ge_u32 s2, 256")
    a("s_cbranch_scc1 LA_end")
    stamp(0)
    a("s_load_dwordx8 s[4:11], s[0:1], 0")
    a("s_load_dwordx8 s[12:19], s[0:1], 32")
    a("v_lshrrev_b32 %s, 6, v0" % v(vT0))
    a("v_and_b32 %s, 63, v0" % v(vLane))
    a("v_readfirstlane_b32 %s, %s" % (s(sW), v(vT0)))
    a("s_and_b32 %s, s2, 7" % s(sT0))
    a("s_lshl_b32 %s, %s, 2" % (s(sT0), s(sT0)))
    a("s_bfe_u32 %s, s2, 0x20003" % s(sT1))
    a("s_add_u32 %s, %s, %s" % (s(sH), s(sT0), s(sT1)))
    a("s_lshr_b32 %s, s2, 5" % s(sB))
    a("s_and_b32 %s, %s, 3" % (s(sQG), s(sW)))
    l16, l4 = vT0, vT1
    a("v_and_b32 %s, 15, %s" % (v(l16), v(vLane)))
    a("v_lshrrev_b32 %s, 4, %s" % (v(l4), v(vLane)))
    a("s_cmp_lt_u32 %s, 4" % s(sW))
    a("s_cbranch_scc1 LA_C")

    def tail_scalar_setup():
        for (r, p, sz) in ((rO, sWS, "0x2000000" if ts else "0x900000"), (rWO, sWO, "0x800000"), (rD, sDBG, "256"), (rOut, sOUT, "0x200000")):
            srd(r, s(p), s(p + 1), sz)
        a("s_lshl_b32 %s, %s, 11" % (s(sM), s(sW)))
        if tmap == "4x8":
            a("s_bfe_u32 %s, s2, 0x20001" % s(sT0))
            a("s_lshl_b32 %s, %s, 2" % (s(sT0), s(sT0)))
            a("s_lshr_b32 %s, s2, 6" % s(sT1))
            a("s_add_u32 %s, %s, %s" % (s(sQT), s(sT0), s(sT1)))
            a("s_and_b32 %s, s2, 1" % s(sT0))
            a("s_lshl_b32 %s, %s, 3" % (s(sT0), s(sT0)))
            a("s_bfe_u32 %s, s2, 0x30003" % s(sT2))
            a("s_add_u32 %s, %s, %s" % (s(sNT), s(sT0), s(sT2)))
            a("s_and_b32 %s, %s, %d" % (s(sT2), s(sT2), {1: 6, 2: 6, 3: 4, 4: 0}[orot]))
            a("s_mov_b32 %s, %s" % (s(sT1), s(sQT)))
        else:
            a("s_bfe_u32 %s, s2, 0x10002" % s(sT0))
            a("s_lshl_b32 %s, %s, 3" % (s(sT0), s(sT0)))
            a("s_lshr_b32 %s, s2, 5" % s(sT1))
            a("s_add_u32 %s, %s, %s" % (s(sQT), s(sT0), s(sT1)))
            a("s_and_b32 %s, s2, 3" % s(sT0))
            a("s_lshl_b32 %s, %s, 2" % (s(sT0), s(sT0)))
            a("s_bfe_u32 %s, s2, 0x20003" % s(sT2))
            a("s_add_u32 %s, %s, %s" % (s(sNT), s(sT0), s(sT2)))
            if orot == 2: a("s_and_b32 %s, %s, 2" % (s(sT2), s(sT2)))
            if orot == 3: a("s_mov_b32 %s, 0" % s(sT2))
            a("s_lshl_b32 %s, %s, 1" % (s(sT2), s(sT2)))
            a("s_add_u32 %s, %s, %s" % (s(sT1), s(sT1), s(sT2)))
        if not orot: a("s_mov_b32 %s, 0" % s(sT1))
        a("s_and_b32 %s, %s, 7" % (s(sT1), s(sT1)))
        a("s_lshl_b32 %s, %s, 17" % (s(sWK0), s(sT1)))
        a("s_mov_b32 %s, %s" % (s(sG), s(sWK0)))
        for g in range(1, 8):
            if lock:
                a("s_cmp_lt_u32 %d, %s" % (g - 1, s(sT1)))
                a("s_mov_b32 %s, %d" % (s(sG + g), g << 17))
                a("s_cselect_b32 %s, %d, %s" % (s(sG + g), (g - 1) << 17, s(sG + g)))
            else:
                a("s_add_u32 %s, %s, %d" % (s(sG + g), s(sWK0), g << 17))
                a("s_and_b32 %s, %s, 0xfffff" % (s(sG + g), s(sG + g)))
        a("s_lshl_b32 %s, %s, 11" % (s(sOK), s(sT1)))
        a("s_lshl_b32 %s, %s, 7" % (s(sNTo), s(sNT)))
        a("s_and_b32 %s, %s, 7" % (s(sT0), s(sNT)))
        a("s_cmp_eq_u32 %s, %d" % (s(sT0), 3 if bad else 99))
        a("s_cselect_b32 %s, 1, %d" % (s(sBad), 1 if allbad else 0))
        a("s_cmp_eq_u32 %s, 1" % s(sBad))
        a("s_cselect_b32 %s, 0, 0x80000" % s(sWKH))
        a("s_add_u32 %s, %s, %s" % (s(sWKH), s(sWKH), s(sWK0)))
        a("s_lshl_b32 %s, %s, 20" % (s(sWB), s(sW)))
        a("s_add_u32 %s, %s, %s" % (s(sWB), s(sWB), s(sNTo)))
        a("s_lshl_b32 %s, %s, 19" % (s(sOB0), s(sQT)))
        a("s_lshl_b32 %s, %s, 14" % (s(sT0), s(sW)))
        a("s_add_u32 %s, %s, %s" % (s(sOB0), s(sOB0), s(sT0)))
    def tail_vector_setup():
        a("v_lshrrev_b32 %s, 4, %s" % (v(vT3), v(vLane)))
        a("v_lshlrev_b32 %s, 1, %s" % (v(vT3), v(vT3)))
        a("v_and_b32 %s, 7, %s" % (v(vWoff), v(vLane)))
        a("v_xor_b32 %s, %s, %s" % (v(vT3), v(vWoff), v(vT3)))
        a("v_lshlrev_b32 %s, 4, %s" % (v(vT3), v(vT3)))
        a("v_lshrrev_b32 %s, 3, %s" % (v(vWoff), v(vLane)))
        a("v_lshl_add_u32 %s, %s, 11, %s" % (v(vWoff), v(vWoff), v(vT3)))
        a("v_and_b32 %s, 3, %s" % (v(vT0), v(vLane)))
        a("v_lshlrev_b32 %s, 3, %s" % (v(vT0), v(vT0)))
        a("v_bfe_u32 %s, %s, 3, 2" % (v(vT1), v(vLane)))
        a("v_lshl_add_u32 %s, %s, 5, %s" % (v(vT0), v(vT1), v(vT0)))
        a("v_lshrrev_b32 %s, 2, %s" % (v(vT1), v(vLane)))
        a("v_lshl_add_u32 %s, %s, 7, %s" % (v(vT0), v(vT1), v(vT0)))
        a("v_add_u32 %s, %s, %s" % (v(vWr), s(sM), v(vT0)))
        for nb in range(1, 4):
            a("v_xor_b32 %s, %d, %s" % (v(vWr + nb), 32 * nb, v(vWr)))
        a("v_lshlrev_b32 %s, 4, %s" % (v(vOo), v(vLane)))

    a("v_lshlrev_b32 %s, 1, %s" % (v(vT2), v(l4)))
    a("v_xor_b32 %s, %s, %s" % (v(vT2), v(l16), v(vT2)))
    a("v_lshlrev_b32 %s, 4, %s" % (v(vT2), v(vT2)))
    a("v_lshl_add_u32 %s, %s, 13, %s" % (v(vW0), v(l4), v(vT2)))
    a("s_lshl_b32 %s, %s, 17" % (s(sT0), s(sQG)))
    a("v_add_u32 %s, %s, %s" % (v(vW0), s(sT0), v(vW0)))
    a("v_xor_b32 %s, 128, %s" % (v(vW1), v(vW0)))
    a("v_and_b32 %s, 7, %s" % (v(vT3), v(vLane)))
    a("v_xor_b32 %s, %s, %s" % (v(vT3), v(vT3), v(l4)))
    a("v_lshlrev_b32 %s, 4, %s" % (v(vT3), v(vT3)))
    a("v_lshrrev_b32 %s, 3, %s" % (v(vX0), v(vLane)))
    a("v_lshl_add_u32 %s, %s, 11, %s" % (v(vX0), v(vX0), v(vT3)))
    a("s_lshl_b32 %s, %s, 16" % (s(sT0), s(sQG)))
    a("v_add_u32 %s, %s, %s" % (v(vX0), s(sT0), v(vX0)))
    a("v_xor_b32 %s, 64, %s" % (v(vX1), v(vX0)))
    a("s_lshl_b32 %s, %s, 12" % (s(sMq), s(sQG)))
    if qrot:
        (bsh, bmul, hsh, hmul) = {1: (0, 2, 0, 4), 2: (1, 4, 1, 8), 3: (2, 8, 1, 8), 4: (1, 4, 0, 4), 5: (0, 2, 1, 8)}[qrot]
        a("s_and_b32 %s, %s, 3" % (s(sT0), s(sH)))
        a("s_lshr_b32 %s, %s, %d" % (s(sT0), s(sT0), hsh))
        a("s_mul_i32 %s, %s, %d" % (s(sT0), s(sT0), hmul))
        a("s_lshr_b32 %s, %s, %d" % (s(sT1), s(sB), bsh))
        a("s_mul_i32 %s, %s, %d" % (s(sT1), s(sT1), bmul))
        a("s_add_u32 %s, %s, %s" % (s(sT0), s(sT0), s(sT1)))
        a("s_and_b32 %s, %s, 15" % (s(sT0), s(sT0)))
        a("s_lshl_b32 %s, %s, 7" % (s(sXo), s(sT0)))
        a("s_lshl_b32 %s, %s, 19" % (s(sWo), s(sT0)))
    else:
        a("s_mov_b32 %s, 0" % s(sXo))
        a("s_mov_b32 %s, 0" % s(sWo))
    a("s_mov_b32 %s, %d" % (s(sIslot), 2 * SLOT))
    a("s_waitcnt lgkmcnt(0)")
    a("s_lshl_b32 %s, %s, 18" % (s(sT0), s(sB)))
    a("s_add_u32 %s, %s, %s" % (s(rX), s(sX), s(sT0)))
    a("s_addc_u32 %s, %s, 0" % (s(rX + 1), s(sX + 1)))
    a("s_mov_b32 %s, 0x40000" % s(rX + 2))
    a("s_mov_b32 %s, 0x20000" % s(rX + 3))
    a("s_lshl_b32 %s, %s, 8" % (s(sT0), s(sH)))
    a("s_add_u32 %s, %s, %s" % (s(rW), s(sWQ), s(sT0)))
    a("s_addc_u32 %s, %s, 0" % (s(rW + 1), s(sWQ + 1)))
    a("s_sub_u32 %s, 0x800000, %s" % (s(rW + 2), s(sT0)))
    a("s_mov_b32 %s, 0x20000" % s(rW + 3))
    def issue_q():
        r = ["s_add_u32 m0, %s, %s" % (s(sIslot), s(sMq)),
             "s_mov_b32 %s, %s" % (s(sT0), s(sXo))]
        for p in range(4):
            r.append("buffer_load_dwordx4 %s, %s, %s offen lds" % (v(vX0 if p % 2 == 0 else vX1), s(rX, 4), s(sT0)))
            if p < 3:
                r.append("s_add_u32 m0, m0, 1024")
                r.append("s_add_u32 %s, %s, 16384" % (s(sT0), s(sT0)))
        r.append("s_add_u32 m0, m0, %d" % (16384 - 3072))
        r.append("s_mov_b32 %s, %s" % (s(sT0), s(sWo)))
        for p in range(4):
            r.append("buffer_load_dwordx4 %s, %s, %s offen lds" % (v(vW0 if p < 2 else vW1), s(rW, 4), s(sT0)))
            if p < 3:
                r.append("s_add_u32 m0, m0, 1024")
                r.append("s_add_u32 %s, %s, 32768" % (s(sT0), s(sT0)))
        r += ["s_add_u32 %s, %s, 128" % (s(sXo), s(sXo)),
              "s_add_u32 %s, %s, 0x80000" % (s(sWo), s(sWo)),
              "s_and_b32 %s, %s, 0x7ff" % (s(sXo), s(sXo)),
              "s_and_b32 %s, %s, 0x7fffff" % (s(sWo), s(sWo)),
              "s_add_u32 %s, %s, %d" % (s(sIslot), s(sIslot), SLOT),
              "s_cmp_ge_u32 %s, %d" % (s(sIslot), SLOT * 3),
              "s_cselect_b32 %s, 0, %s" % (s(sIslot), s(sIslot))]
        return r
    emit(issue_q())
    a("s_lshl_b32 %s, %s, 5" % (s(sT0), s(sB)))
    a("s_add_u32 %s, %s, %s" % (s(sT0), s(sT0), s(sH)))
    a("s_lshr_b32 %s, %s, 13" % (s(sT1), s(sT0)))
    a("s_lshl_b32 %s, %s, 19" % (s(sT0), s(sT0)))
    for (r, p) in ((rK, sKp), (rV, sVp)):
        a("s_add_u32 %s, %s, %s" % (s(r), s(p), s(sT0)))
        a("s_addc_u32 %s, %s, %s" % (s(r + 1), s(p + 1), s(sT1)))
        a("s_mov_b32 %s, 0x80000" % s(r + 2))
        a("s_mov_b32 %s, 0x20000" % s(r + 3))
    a("v_lshl_add_u32 %s, %s, 8, %s" % (v(vVd), v(l4), v(vT2)))
    a("v_xor_b32 %s, 128, %s" % (v(vVd + 1), v(vVd)))
    a("v_xor_b32 %s, %s, %s" % (v(vT3), v(l16), v(l4)))
    a("v_lshlrev_b32 %s, 4, %s" % (v(vT3), v(vT3)))
    a("v_lshl_add_u32 %s, %s, 8, %s" % (v(vKd), v(l4), v(vT3)))
    for c in range(1, 4):
        a("v_xor_b32 %s, %d, %s" % (v(vKd + c), 64 * c, v(vKd)))
    if rot:
        a("s_mul_i32 %s, s2, 5" % s(sKoK))
        a("s_and_b32 %s, %s, 31" % (s(sKoK), s(sKoK)))
        a("s_lshl_b32 %s, %s, 14" % (s(sKoK), s(sKoK)))
    else:
        a("s_mov_b32 %s, 0" % s(sKoK))
    a("s_mov_b32 %s, %s" % (s(sKoV), s(sKoK)))
    tail_scalar_setup()
    tail_vector_setup()
    emit(issue_q())
    a("s_mov_b32 %s, 0" % s(sIt))
    a.label("LA_Lq")
    a("s_waitcnt vmcnt(8)")
    a("s_barrier")
    emit(issue_q())
    a("s_add_u32 %s, %s, 1" % (s(sIt), s(sIt)))
    a("s_cmp_lt_u32 %s, 14" % s(sIt))
    a("s_cbranch_scc1 LA_Lq")
    a("s_cmp_lg_u32 %s, 4" % s(sW))
    a("s_cbranch_scc1 LA_H")

    def Abase(step): e = step % (F // 2); return (112 + 16 * e) if e < 4 else (48 + 16 * (e - 4))
    def Breg(e): e %= D; return (16 + 16 * e) if e < 2 else 240
    vAcc = vO
    def wo_dma(sMx, sWBx, ch, band, sK=None):
        pre = ["s_add_u32 %s, %s, %d" % (s(sT0), s(sG + ch // 4), (ch % 4) * 32768)] if sK is None else [
            "s_cmp_eq_u32 %s, 1" % s(sBad),
            "s_cselect_b32 %s, %s, %s" % (s(sT0), s(sG + ch // 4), s(sG + 4 + ch // 4)),
            "s_add_u32 %s, %s, %d" % (s(sT0), s(sT0), (ch % 4) * 32768)]
        return pre + [
                "s_add_u32 m0, %s, %d" % (s(sMx), band * BAND),
                "s_add_u32 %s, %s, %s" % (s(sT0), s(sT0), s(sWBx)),
                "buffer_load_dwordx4 %s, %s, %s offen lds" % (v(vWoff), s(rWO, 4), s(sT0)),
                "s_add_u32 m0, m0, 1024",
                "s_add_u32 %s, %s, 16384" % (s(sT0), s(sT0)),
                "buffer_load_dwordx4 %s, %s, %s offen lds" % (v(vWoff), s(rWO, 4), s(sT0))]
    curhi = {"v": None}
    def rd_chunk(lg, ch, band):
        hi, lo = divmod(band, 4)
        base = vWr
        if hi:
            base = vWrT
            if curhi["v"] != hi:
                for nb in range(4): a("v_add_u32 %s, 0x%x, %s" % (v(vWrT + nb), hi * 65536, v(vWr + nb)))
                curhi["v"] = hi
        for nb in range(4):
            a("ds_read_b64_tr_b16 %s, %s offset:%d" % (v(Abase(ch // 2) + nb * 4 + 2 * (ch % 2), 2), v(base + nb), lo * BAND))
            lg.issue(("A", ch))
    def kv_piece(mat, idx, ldsbase):
        r = []
        g, c = divmod(idx, 4)
        so = sKoK if mat == 0 else sKoV
        if c == 0:
            off = g * 4096 + (16384 if mat else 0)
            if ldsbase[0] == "imm": r.append("s_mov_b32 m0, %d" % (ldsbase[1] + off))
            else: r.append("s_add_u32 m0, %s, %d" % (s(ldsbase[1]), off))
            r.append("s_nop 0")
        r.append("buffer_load_dwordx4 %s, %s, %s offen offset:%d nt lds" % (v(vKd + c if mat == 0 else vVd + (c & 1)), s(rK if mat == 0 else rV, 4), s(so), c * 1024))
        if c == 3:
            r.append("s_add_u32 %s, %s, 4096" % (s(so), s(so)))
            if g == 3: r.append("s_and_b32 %s, %s, 0x7ffff" % (s(so), s(so)))
        return r
    pro = [kv_piece(0, i, ("imm", 0)) for i in range(16)] + \
          [kv_piece(1, i, ("imm", SLOT)) for i in range(16)] + [kv_piece(0, i, ("imm", SLOT)) for i in range(16)]
    a("s_waitcnt vmcnt(8)")
    a("s_barrier")
    for n in range(16): emit(pro[n])
    a("s_waitcnt vmcnt(16)")
    a("s_barrier")
    for n in range(16, 48):
        if n >= W: a("s_waitcnt vmcnt(%d)" % (W - 1))
        emit(pro[n])
        if n == 15 + W: a("s_barrier")
    a("s_mov_b32 %s, %d" % (s(sIslot), 2 * SLOT))
    a("s_mov_b32 %s, 1" % s(sIt))
    RU = [ru0 + per * k for k in range(4)]
    sNext = sXo
    a("s_cmp_eq_u32 %s, 1" % s(sBad))
    a("s_cselect_b32 %s, 1000, %d" % (s(sNext), RU[0] + 1))
    a.raw(".p2align 6")
    a.label("LA_H0")
    for n in range(32):
        a("s_waitcnt vmcnt(%d)%s" % (W - 1, " lgkmcnt(0)" if n == W - 1 else ""))
        emit(kv_piece(1 if n < 16 else 0, n % 16, ("s", sIslot)))
        if n == W - 1:
            a("s_barrier")
            a("s_cmp_eq_u32 %s, %s" % (s(sIt), s(sNext)))
            a("s_cbranch_scc1 LA_H0x")
            a.label("LA_H0b")
    a("s_add_u32 %s, %s, %d" % (s(sIslot), s(sIslot), SLOT))
    a("s_cmp_ge_u32 %s, %d" % (s(sIslot), SLOT * 3))
    a("s_cselect_b32 %s, 0, %s" % (s(sIslot), s(sIslot)))
    a("s_add_u32 %s, %s, 1" % (s(sIt), s(sIt)))
    a("s_cmp_lt_u32 %s, 31" % s(sIt))
    a("s_cbranch_scc1 LA_H0")
    done30 = False
    for n in range(16):
        a("s_waitcnt vmcnt(%d)" % (W - 1))
        emit(kv_piece(1, n, ("s", sIslot)))
        if n == W - 1:
            a("s_barrier"); done30 = True
    if not done30:
        a("s_waitcnt vmcnt(16)")
        a("s_barrier")
    a("s_waitcnt vmcnt(0)")
    a("s_barrier")
    a("s_branch LA_Hend")
    a.label("LA_H0x")
    dummy = Cnt(a, "lgkmcnt", 15)
    for k in range(4):
        if k < 3:
            a("s_cmp_lg_u32 %s, %d" % (s(sIt), RU[k] + 1))
            a("s_cbranch_scc1 LA_H0x%d" % (k + 1))
        curhi["v"] = None
        for c in range(4): rd_chunk(dummy, 4 * k + c, 6 + c)
        a("s_add_u32 %s, %s, %d" % (s(sNext), s(sNext), per if k < 3 else 1000))
        a("s_branch LA_H0b")
        if k < 3: a.label("LA_H0x%d" % (k + 1))

    a.label("LA_H")
    sMa, sMb, sWBa, sWBb = sXo, sWo, sKoK, sKoV
    a("s_sub_u32 %s, %s, 5" % (s(sT0), s(sW)))
    a("s_lshl_b32 %s, %s, 1" % (s(sT0), s(sT0)))
    a("s_add_u32 %s, %s, 1" % (s(sT1), s(sT0)))
    a("s_lshl_b32 %s, %s, 11" % (s(sMa), s(sT0)))
    a("s_lshl_b32 %s, %s, 11" % (s(sMb), s(sT1)))
    a("s_lshl_b32 %s, %s, 20" % (s(sWBa), s(sT0)))
    a("s_lshl_b32 %s, %s, 20" % (s(sWBb), s(sT1)))
    a("s_add_u32 %s, %s, %s" % (s(sWBa), s(sWBa), s(sNTo)))
    a("s_add_u32 %s, %s, %s" % (s(sWBb), s(sWBb), s(sNTo)))
    a("s_waitcnt vmcnt(8)")
    a("s_barrier")
    a("s_waitcnt vmcnt(0)")
    a("s_barrier")
    a("s_barrier")
    vm = Cnt(a, "vmcnt", 63); lg = Cnt(a, "lgkmcnt", 15)
    LB = [6, 7, 8, 9]
    bandL = {0: 6, 1: 7, 2: 8, 3: 9, 4: 4, 5: 0, 6: 1, 7: 2, 8: 3}
    bandH = {0: 6, 1: 7, 2: 8, 3: 9}
    lbl = [0]
    def late(j):
        emit(wo_dma(sM, sWB, j, bandL[j], sWKH))
        lbl[0] += 1
        a("s_cmp_eq_u32 %s, 7" % s(sW))
        a("s_cbranch_scc1 LA_hs%d" % lbl[0])
        emit(wo_dma(sMa, sWBa, j, bandL[j]))
        emit(wo_dma(sMb, sWBb, j, bandL[j]))
        a("s_branch LA_ht%d" % lbl[0])
        a.label("LA_hs%d" % lbl[0])
        emit(wo_dma(sMa, sWBa, j, bandL[j], sWKH))
        a.label("LA_ht%d" % lbl[0])
    for u in range(32):
        if u == 30 or u in RU: a("s_waitcnt vmcnt(0)")
        a("s_waitcnt lgkmcnt(0)")
        a("s_barrier")
        if u in RU:
            k = RU.index(u)
            curhi["v"] = None
            lbl[0] += 1
            a("s_cmp_eq_u32 %s, 1" % s(sBad))
            a("s_cbranch_scc1 LA_hs%d" % lbl[0])
            for c in range(4): rd_chunk(lg, 4 * k + c, 6 + c)
            a.label("LA_hs%d" % lbl[0])
        DU = [r + 1 for r in RU]
        if lastb: DU[3] = lastb
        if u in DU:
            k = DU.index(u) + 1
            lbl[0] += 1
            a("s_cmp_eq_u32 %s, 1" % s(sBad))
            a("s_cbranch_scc1 LA_hs%d" % lbl[0])
            for c in range(4): emit(wo_dma(sM, sWB, 4 * k + c, 6 + c))
            a("s_cmp_lg_u32 %s, 7" % s(sW))
            a("s_cbranch_scc1 LA_hs%d" % lbl[0])
            for c in range(4): emit(wo_dma(sMa, sWBa, 4 * k + c, 6 + c))
            a.label("LA_hs%d" % lbl[0])
        if u == 29: late(4)
        if u == 30: late(5); late(6)
        if u == 31: late(7); late(8)
    for c in range(4): bandH[16 + c] = 6 + c
    for j in range(4, 9): bandH[16 + j] = bandL[j]
    own_dma = 25
    a.label("LA_Hend")
    stamp(1); stamp(2)
    if prioH: a("s_setprio %d" % prioH)
    a("s_cmp_eq_u32 %s, 1" % s(sBad))
    a("s_cbranch_scc1 LA_tailL")
    nH_dma = own_dma
    for i in range(64):
        a("v_mov_b32 %s, 0" % v(vAcc + i))
    a("s_waitcnt vmcnt(0)")
    a("s_barrier")
    a("s_branch LA_tailH")

    a.label("LA_C")
    if cprio: a("s_setprio %d" % cprio)
    if warm:
        a("s_getpc_b64 s[20:21]")
        a.label("LA_pc")
        a("s_sub_u32 s20, s20, LA_pc-%s" % name)
        a("s_subb_u32 s21, s21, 0")
        a("v_lshlrev_b32 %s, 6, v0" % v(vT2))
        for k in range(warm):
            a("v_min_u32 %s, LA_codeend-%s-4, %s" % (v(vT3), name, v(vT2)))
            a("global_load_dword v%d, %s, s[20:21]" % (20 + k, v(vT3)))
            a("v_add_u32 %s, 16384, %s" % (v(vT2), v(vT2)))
    a("s_waitcnt lgkmcnt(0)")
    tail_scalar_setup()
    a("s_cmp_lg_u32 %s, 0" % s(sW))
    a("s_cbranch_scc1 LA_noinit")
    a("s_lshl_b32 %s, %s, 3" % (s(sT0), s(sB)))
    a("s_lshr_b32 %s, %s, 2" % (s(sT1), s(sH)))
    a("s_add_u32 %s, %s, %s" % (s(sT0), s(sT0), s(sT1)))
    a("s_lshl_b32 %s, %s, 2" % (s(sT2), s(sT0)))
    a("s_mul_i32 %s, %s, %d" % (s(sT0), s(sT0), FLAG_STRIDE))
    a("s_and_b32 %s, %s, 3" % (s(sT1), s(sH)))
    a("s_lshl_b32 %s, %s, 2" % (s(sT1), s(sT1)))
    a("s_add_u32 %s, %s, %s" % (s(sT0), s(sT0), s(sT1)))
    a("s_add_u32 %s, %s, 0x%x" % (s(sMq), s(sT0), FLAG_OFF))
    a("v_mov_b32 %s, 0" % v(vT2))
    a("v_mov_b32 %s, 1" % v(vT3))
    a("s_mov_b64 exec, 1")
    a("buffer_store_dword %s, %s, %s, %s offen sc1" % (v(vT2), v(vT2), s(rO, 4), s(sMq)))
    a("s_waitcnt vmcnt(0)")
    a("buffer_atomic_add %s, %s, %s, %s offen sc1" % (v(vT3), v(vT2), s(rD, 4), s(sT2)))
    a("s_mov_b64 exec, -1")
    a("s_nop 1")
    a.label("LA_noinit")
    vEW = 12
    a("v_lshlrev_b32 %s, 1, %s" % (v(vT3), v(l4)))
    a("v_and_b32 %s, 7, %s" % (v(vEW), v(vLane)))
    a("v_xor_b32 %s, %s, %s" % (v(vT3), v(vEW), v(vT3)))
    a("v_lshlrev_b32 %s, 4, %s" % (v(vT3), v(vT3)))
    a("v_lshrrev_b32 %s, 3, %s" % (v(vEW), v(vLane)))
    a("v_lshl_add_u32 %s, %s, 11, %s" % (v(vEW), v(vEW), v(vT3)))
    a("s_lshr_b32 %s, s2, 3" % s(sXo))
    a("s_and_b32 %s, %s, %d" % (s(sXo), s(sXo), bmask))
    a("s_add_u32 %s, %s, %d" % (s(sXo), s(sXo), b0))
    a("v_xor_b32 %s, %s, %s" % (v(vT3), v(l4), v(l16)))
    a("v_lshlrev_b32 %s, 4, %s" % (v(vT3), v(vT3)))
    a("v_lshl_add_u32 %s, %s, 8, %s" % (v(vKb), v(l16), v(vT3)))
    a("v_and_b32 %s, 3, %s" % (v(vT2), v(vLane)))
    a("v_lshlrev_b32 %s, 3, %s" % (v(vT2), v(vT2)))
    a("v_add_u32 %s, 16384, %s" % (v(vT2), v(vT2)))
    a("v_bfe_u32 %s, %s, 2, 3" % (v(vT3), v(vLane)))
    a("v_lshl_add_u32 %s, %s, 5, %s" % (v(vT2), v(vT3), v(vT2)))
    a("v_lshrrev_b32 %s, 2, %s" % (v(vT3), v(vLane)))
    a("v_lshl_add_u32 %s, %s, 8, %s" % (v(vVb), v(vT3), v(vT2)))
    a("v_bfe_u32 %s, %s, 2, 2" % (v(vT3), v(vLane)))
    a("v_lshl_add_u32 %s, %s, 3, %s" % (v(vT3), v(l4), v(vT3)))
    a("v_lshl_add_u32 %s, %s, 8, %s" % (v(vWb), v(vT3), v(vT2)))
    a("v_bfe_u32 %s, %s, 1, 3" % (v(vT3), v(vLane)))
    a("v_xor_b32 %s, %s, %s" % (v(vT3), v(l4), v(vT3)))
    a("v_lshlrev_b32 %s, 4, %s" % (v(vT3), v(vT3)))
    a("v_lshl_add_u32 %s, %s, 7, %s" % (v(vXb), v(l16), v(vT3)))
    a("s_lshl_b32 %s, %s, 12" % (s(sT0), s(sQG)))
    a("v_add_u32 %s, %s, %s" % (v(vXb), s(sT0), v(vXb)))
    vQa = vO
    def xf(ks, qb): return vKf + (2 * ks + qb) * 4
    def wf(G, i): return (vVf if G < 2 else vS0) + ((G % 2) * 4 + i) * 4
    for i in range(64): a("v_mov_b32 %s, 0" % v(vQa + i))
    for i in range(8): a("v_mov_b32 %s, 0" % v(xf(1, 0) + i))
    for i in range(32): a("v_mov_b32 %s, 0" % v(vS0 + i))
    for i in range(8): a("v_mov_b32 %s, 0" % v(vNM + i))
    a("v_mov_b32 %s, 0" % v(vL0))
    a("v_mov_b32 %s, 0" % v(vL1))
    a("s_mov_b32 %s, 0x%08x" % (s(sThr), f2u(-1.0)))
    a("s_mov_b32 %s, 0xff800000" % s(sDmin))
    a("s_mov_b32 %s, 0x%08x" % (s(sC), f2u(CSCALE)))
    vXa, vWa = vPb + 8, vPb
    def qreads(G):
        ks, hh = divmod(G, 2)
        r = []
        if hh == 0:
            for qb in range(2):
                r.append("ds_read_b128 %s, %s offset:%d" % (v(xf(ks, qb), 4), v(vXa + ks), qb * 2048))
        for i in range(4):
            for j in range(2):
                r.append("ds_read_b64_tr_b16 %s, %s offset:%d" % (v(wf(G, i) + 2 * j, 2), v(vWa + 4 * hh + i), ks * 8192 + j * 1024))
        return r
    def qm(G, i, qb):
        ks, hh = divmod(G, 2)
        d = vQa + (2 * (4 * hh + i) + qb) * 4
        return mfma(d, wf(G, i), xf(ks, qb), d)
    def qaddr():
        r = ["v_add_u32 %s, %s, %s" % (v(vXa), s(sCslot), v(vXb)),
             "v_add_u32 %s, %s, %s" % (v(vWa), s(sCslot), v(vWb))]
        for i in range(1, 8):
            r.append("v_xor_b32 %s, %d, %s" % (v(vWa + i), 32 * i, v(vWa)))
        r.append("v_xor_b32 %s, 64, %s" % (v(vXa + 1), v(vXa)))
        r += ["s_add_u32 %s, %s, %d" % (s(sCslot), s(sCslot), SLOT),
              "s_cmp_ge_u32 %s, %d" % (s(sCslot), SLOT * 3),
              "s_cselect_b32 %s, 0, %s" % (s(sCslot), s(sCslot))]
        return r
    def group(Gm, Gr, pre=None, post=None):
        rd = qreads(Gr)
        ms = [qm(Gm, i, qb) for i in range(4) for qb in range(2)]
        r = list(pre or [])
        post = list(post or [])
        nper = 2 if post else (len(rd) + 6) // 7
        p = 0
        if qsched == 1 and not post:
            cnt = [2, 2, 1, 1, 1, 1, 1, 1] if len(rd) == 10 else [1] * 8
            for k in range(8):
                r.extend(rd[p:p + cnt[k]]); p += cnt[k]
                r.append(ms[k])
            return r
        for k in range(8):
            r.extend(rd[p:p + nper]); p += nper
            if p >= len(rd) + nper and post:
                r.extend(post[:4]); post = post[4:]
            r.append(ms[k])
        r.extend(post)
        return r
    a("s_mov_b32 %s, %d" % (s(sCslot), 2 * SLOT))
    a("s_mov_b32 %s, 0" % s(sIt))
    emit(qaddr())
    a.raw(".p2align 6")
    a.label("LA_Cq")
    a("s_waitcnt lgkmcnt(0)")
    a("s_barrier")
    emit(group(2, 0))
    emit(group(3, 1))
    a("s_cmp_eq_u32 %s, %s" % (s(sIt), s(sXo)))
    a("s_cbranch_scc1 LA_side")
    a.label("LA_sideb")
    emit(group(0, 2, pre=["s_waitcnt lgkmcnt(8)"]))
    emit(group(1, 3, pre=["s_waitcnt lgkmcnt(10)"], post=qaddr()))
    a("s_add_u32 %s, %s, 1" % (s(sIt), s(sIt)))
    a("s_cmp_lt_u32 %s, 16" % s(sIt))
    a("s_cbranch_scc1 LA_Cq")
    a("s_waitcnt lgkmcnt(0)")
    emit([qm(G, i, qb) for G in (2, 3) for i in range(4) for qb in range(2)])
    def kaddr(base_expr):
        r = [base_expr]
        for ks in range(1, 4): r.append("v_xor_b32 %s, %d, %s" % (v(vP + ks), 64 * ks, v(vP)))
        return r
    def kread(f, half):
        ks, kb = divmod(f, 2)
        return "ds_read_b128 %s, %s offset:%d" % (v(vKf + 4 * f, 4), v(vP + ks), half * 8192 + kb * 4096)
    emit(kaddr("v_mov_b32 %s, %s" % (v(vP), v(vKb))))
    a("s_waitcnt vmcnt(0)")
    a("s_barrier")
    for f in range(8): a(kread(f, 0))
    for ks in range(4):
        for qb in range(2):
            for e in range(2):
                src = vQa + (2 * (2 * ks + e) + qb) * 4
                for i in range(4): a("v_mul_f32 %s, %s, %s" % (v(src + i), s(sC), v(src + i)))
                for d_ in range(2):
                    a("v_cvt_pk_bf16_f32 %s, %s, %s" % (v(vQ + (2 * ks + qb) * 4 + 2 * e + d_), v(src + 2 * d_), v(src + 2 * d_ + 1)))
    a("s_nop 1")
    for fr in range(8):
        for d_ in range(2):
            a("v_permlane32_swap_b32 %s, %s" % (v(vQ + 4 * fr + d_), v(vQ + 4 * fr + 2 + d_)))
    a("s_nop 1")
    for fr in range(8):
        for d_ in range(2):
            a("v_permlane16_swap_b32 %s, %s" % (v(vQ + 4 * fr + d_), v(vQ + 4 * fr + 2 + d_)))
    stamp(1)
    def qkm(f, qb, S):
        ks, kb = divmod(f, 2)
        d = S + 8 * qb + 4 * kb
        return mfma(d, vKf + 4 * f, vQ + (2 * ks + qb) * 4, vNM + 4 * qb if ks == 0 else d)
    a("s_waitcnt lgkmcnt(0)")
    a("s_nop 1")
    for f in range(8):
        for qb in range(2):
            a(qkm(f, qb, vS0))
            for i in range(4): a("v_mov_b32 %s, 0" % v(vO + 8 * f + 4 * qb + i))
    for f in range(8): a(kread(f, 1))
    a("s_mov_b32 %s, %d" % (s(sCslot), SLOT))
    a("s_mov_b32 %s, 0" % s(sIt))

    def vread(n, half):
        db, j = divmod(n, 2)
        return "ds_read_b64_tr_b16 %s, %s offset:%d" % (v(vVf + db * 4 + 2 * j, 2), v(vVa + db), half * 8192 + j * 4096)
    def ex(j, S): return "v_exp_f32 %s, %s" % (v(vP + j), v(S + j))
    def cvt(j): return "v_cvt_pk_bf16_f32 %s, %s, %s" % (v(vPb + j), v(vP + 2 * j), v(vP + 2 * j + 1))
    vTp = 12
    def adds(g):
        if pk:
            t = vTp + 2 * (g // 4)
            if g % 4 == 0: return []
            if g % 4 == 1: return ["v_pk_add_f32 %s, %s, %s" % (v(t, 2), v(vP + 2 * g - 2, 2), v(vP + 2 * g, 2))]
            r = ["v_pk_add_f32 %s, %s, %s" % (v(t, 2), v(vP + 2 * g, 2), v(t, 2))]
            if g % 4 == 3: r.append("v_add_f32 %s, %s, %s" % (v(vTs if g < 4 else vTs2), v(t), v(t + 1)))
            return r
        t = vTs if g < 4 else vTs2
        if g % 4 == 0: return ["v_add_f32 %s, %s, %s" % (v(t), v(vP + 2 * g), v(vP + 2 * g + 1))]
        return ["v_add_f32 %s, %s, %s" % (v(t), v(vP + 2 * g), v(t)), "v_add_f32 %s, %s, %s" % (v(t), v(vP + 2 * g + 1), v(t))]
    def phaseX(Scur, Snext, half, tag):
        order = [(f, qb) for f in range(8) for qb in range(2)]
        if pvord & 2:
            order = [(2 * ks + kb, qb) for ks in range(4) for qb in range(2) for kb in range(2)]
        for f in range(8):
            ad = adds(f - 1) if f > 0 else []
            a(qkm(order[2 * f][0], order[2 * f][1], Snext))
            a(ex(2 * f, Scur))
            if ad: a(ad[0])
            a(vread(2 * f, half))
            a(qkm(order[2 * f + 1][0], order[2 * f + 1][1], Snext))
            a(ex(2 * f + 1, Scur))
            if len(ad) > 1: a(ad[1])
            if f > 0: a(cvt(f - 1))
            a(vread(2 * f + 1, half))
        emit(adds(7)); a(cvt(7))
        a("v_max_f32 %s, %s, %s" % (v(vT0), v(vTs2), v(vTs)))
        a("v_cmp_lt_f32 vcc, %s, %s" % (s(sThr), v(vT0)))
        a("s_cbranch_vccnz LA_rare%s" % tag)
        a.label("LA_back%s" % tag)
        if pk: a("v_pk_add_f32 %s, %s, %s" % (v(vL0, 2), v(vTs, 2), v(vL0, 2)))
        else:
            a("v_add_f32 %s, %s, %s" % (v(vL0), v(vTs), v(vL0)))
            a("v_add_f32 %s, %s, %s" % (v(vL1), v(vTs2), v(vL1)))
    def phaseY(half, extra=None):
        emit(kaddr("v_add_u32 %s, %s, %s" % (v(vP), s(sCslot), v(vKb))))
        extra = list(extra or [])
        if pvord & 1: order = [(4 * hh + i, qb) for hh in range(2) for qb in range(2) for i in range(4)]
        else: order = [(db, qb) for db in range(8) for qb in range(2)]
        for n, (db, qb) in enumerate(order):
            if n == 0 or n == 8: a("s_waitcnt lgkmcnt(8)")
            d = vO + (2 * db + qb) * 4
            a(mfma(d, vVf + 4 * db, vPb + 4 * qb, d))
            if n < 8: a(kread(n, half))
            elif extra:
                emit(extra[:2]); extra = extra[2:]
        assert not extra
    def vaddr():
        r = ["v_add_u32 %s, %s, %s" % (v(vVa), s(sCslot), v(vVb))]
        for i in range(1, 8): r.append("v_xor_b32 %s, %d, %s" % (v(vVa + i), 32 * i, v(vVa)))
        return r
    emit(vaddr())
    a.raw(".p2align 6")
    a.label("LA_loop")
    a("s_waitcnt lgkmcnt(0)")
    a("s_barrier")
    phaseX(vS0, vS1, 0, "0")
    phaseY(0)
    a("s_waitcnt lgkmcnt(0)")
    phaseX(vS1, vS0, 1, "1")
    phaseY(1, extra=["s_add_u32 %s, %s, %d" % (s(sCslot), s(sCslot), SLOT),
                     "s_cmp_ge_u32 %s, %d" % (s(sCslot), SLOT * 3),
                     "s_cselect_b32 %s, 0, %s" % (s(sCslot), s(sCslot))] + vaddr() +
                    ["s_add_u32 %s, %s, 1" % (s(sIt), s(sIt)), "s_cmp_lt_u32 %s, 32" % s(sIt)])
    a("s_cbranch_scc1 LA_loop")
    stamp(2)
    def xreduce(regs, op):
        for swap in ("v_permlane32_swap_b32", "v_permlane16_swap_b32"):
            for r_, t_ in zip(regs, (vT0, vT1)): a("v_mov_b32 %s, %s" % (v(t_), v(r_)))
            a("s_nop 1")
            for r_, t_ in zip(regs, (vT0, vT1)): a("%s %s, %s" % (swap, v(r_), v(t_)))
            a("s_nop 0")
            for r_, t_ in zip(regs, (vT0, vT1)): a("%s %s, %s, %s" % (op, v(r_), v(r_), v(t_)))
    xreduce((vL0, vL1), "v_add_f32")
    a("v_rcp_f32 %s, %s" % (v(vT2), v(vL0)))
    a("v_rcp_f32 %s, %s" % (v(vT3), v(vL1)))
    a("s_lshl_b32 %s, %s, 2" % (s(sT2), s(sB)))
    a("s_add_u32 %s, %s, %s" % (s(sT2), s(sT2), s(sQG)))
    a("s_lshl_b32 %s, %s, 6" % (s(sT2), s(sT2)))
    a("s_add_u32 %s, %s, %s" % (s(sT2), s(sT2), s(sH)))
    a("s_lshl_b32 %s, %s, 12" % (s(sT2), s(sT2)))
    a("s_add_u32 %s, %s, 0x20000" % (s(sT1), s(sT2)))
    a("v_lshlrev_b32 %s, 4, %s" % (v(vOo), v(vLane)))
    vOb = 48
    for m in range(4):
        for qb in range(2):
            dst = vOb + (2 * m + qb) * 4
            for e in range(2):
                src = vO + (2 * (2 * m + e) + qb) * 4
                for i in range(4): a("v_mul_f32 %s, %s, %s" % (v(src + i), v(vT2 + qb), v(src + i)))
                for d_ in range(2):
                    a("v_cvt_pk_bf16_f32 %s, %s, %s" % (v(dst + 2 * e + d_), v(src + 2 * d_), v(src + 2 * d_ + 1)))
            a("buffer_store_dwordx4 %s, %s, %s, %s offen offset:%d sc1" % (v(dst, 4), v(vOo), s(rO, 4), s(sT2 if qb == 0 else sT1), m * 1024))
    tail_vector_setup()
    a("s_waitcnt lgkmcnt(0)")
    a.label("LA_tailL")
    lgL = Cnt(a, "lgkmcnt", 15)
    curhi["v"] = None
    for ch in range(5): rd_chunk(lgL, ch, bandL[ch])
    for i in range(64):
        a("v_mov_b32 %s, 0" % v(vAcc + i))
    a("s_waitcnt vmcnt(0) lgkmcnt(0)")
    a("s_barrier")
    a("s_cmp_lg_u32 %s, 0" % s(sW))
    a("s_cbranch_scc1 LA_noflag")
    a("v_mov_b32 %s, 0" % v(vT0))
    a("v_mov_b32 %s, 1" % v(vT1))
    a("s_mov_b64 exec, 1")
    a("buffer_store_dword %s, %s, %s, %s offen sc1" % (v(vT1), v(vT0), s(rO, 4), s(sMq)))
    a("s_mov_b64 exec, -1")
    a.label("LA_noflag")

    def tail(tag, nread, ndma, band_of, free_bands):
        vm = Cnt(a, "vmcnt", 63); lg = Cnt(a, "lgkmcnt", 15)
        curhi["v"] = None
        band_of = dict(band_of)
        st = {"dma": ndma}
        def dma(band):
            ch = st["dma"]
            if ch >= 32: return
            st["dma"] += 1
            band_of[ch] = band
            emit(wo_dma(sM, sWB, ch, band))
            vm.issue(("W", ch)); vm.issue(("W", ch))
        stamp(3)
        a("v_mov_b32 %s, 0" % v(vT0))
        a("s_lshr_b32 %s, %s, 1" % (s(sT2), s(sQT)))
        a("s_lshl_b32 %s, %s, 3" % (s(sT2), s(sT2)))
        a("s_add_u32 %s, %s, %s" % (s(sT2), s(sT2), s(sW)))
        a("s_lshl_b32 %s, %s, 2" % (s(sLim), s(sT2)))
        a("s_mul_i32 %s, %s, %d" % (s(sE), s(sT2), FLAG_STRIDE))
        a("s_add_u32 %s, %s, 0x%x" % (s(sE), s(sE), FLAG_OFF))
        a("buffer_load_dword %s, %s, %s, %s offen sc1" % (v(vT2), v(vT0), s(rD, 4), s(sLim))); vm.issue("init")
        for b in free_bands: dma(b)
        pend = []
        while nread < F:
            vm.wait(("W", nread))
            rd_chunk(lg, nread, band_of[nread])
            pend.append(nread)
            if len(pend) > 1:
                p = pend.pop(0)
                lg.wait(("A", p))
                dma(band_of[p])
            nread += 1
        for p in pend:
            lg.wait(("A", p)); dma(band_of[p])
        pend = []
        vm.wait("init")
        stamp(4)
        a("s_mov_b32 %s, 0" % s(sSpin))
        a.label("LA_init%s" % tag)
        a("v_readfirstlane_b32 %s, %s" % (s(sT0), v(vT2)))
        a("s_add_u32 %s, %s, 1" % (s(sSpin), s(sSpin)))
        a("s_cmp_ge_u32 %s, 4" % s(sT0))
        a("s_cbranch_scc1 LA_poll%s" % tag)
        a("s_cmp_ge_u32 %s, %d" % (s(sSpin), SPIN_MAX))
        a("s_cbranch_scc1 LA_poll%s" % tag)
        a("s_sleep 8")
        a("buffer_load_dword %s, %s, %s, %s offen sc1" % (v(vT2), v(vT0), s(rD, 4), s(sLim)))
        a("s_waitcnt vmcnt(0)")
        a("s_branch LA_init%s" % tag)
        vF = Breg(0)
        a.label("LA_poll%s" % tag)
        a("buffer_load_dwordx4 %s, %s, %s, %s offen sc1" % (v(vF, 4), v(vT0), s(rO, 4), s(sE)))
        a("s_add_u32 %s, %s, 1" % (s(sSpin), s(sSpin)))
        a("s_waitcnt vmcnt(0)")
        a("v_and_b32 %s, %s, %s" % (v(vF), v(vF), v(vF + 1)))
        a("v_and_b32 %s, %s, %s" % (v(vF + 2), v(vF + 2), v(vF + 3)))
        a("v_and_b32 %s, %s, %s" % (v(vF), v(vF), v(vF + 2)))
        a("s_nop 0")
        a("v_readfirstlane_b32 %s, %s" % (s(sT0), v(vF)))
        a("s_cmp_eq_u32 %s, 1" % s(sT0))
        a("s_cbranch_scc1 LA_go%s" % tag)
        a("s_cmp_ge_u32 %s, %d" % (s(sSpin), SPIN_MAX))
        a("s_cbranch_scc1 LA_go%s" % tag)
        a("s_sleep 4")
        a("s_branch LA_poll%s" % tag)
        a.label("LA_go%s" % tag)
        vm.drain(False)
        stamp(5)
        def oload(i, u):
            if i >= 16: return
            if u == 0:
                a("s_lshr_b32 %s, %s, 6" % (s(sT1), s(sG + i // 2)))
                if i % 2: a("s_add_u32 %s, %s, 1024" % (s(sT1), s(sT1)))
                a("s_add_u32 %s, %s, %s" % (s(sT1), s(sT1), s(sOB0)))
            else: a("s_add_u32 %s, %s, 0x20000" % (s(sT1), s(sT1)))
            a("buffer_load_dwordx4 %s, %s, %s, %s offen sc1" % (v(Breg(i) + 4 * u, 4), v(vOo), s(rO, 4), s(sT1))); vm.issue(("O", i, u))
        for i in range(D):
            for u in range(4): oload(i, u)
        for i in range(16):
            lg.wait(("A", 2 * i + 1))
            for u in range(4):
                vm.wait(("O", i, u))
                for nb in range(4):
                    acc = vAcc + (u * 4 + nb) * 4
                    a(mfma(acc, Abase(i) + nb * 4, Breg(i) + u * 4, acc))
                oload(i + D, u)
            for p in pend:
                lg.wait(("A", p)); dma(band_of[p])
            pend = []
            for ch in (2 * i + F, 2 * i + F + 1):
                if ch < 32:
                    vm.wait(("W", ch))
                    rd_chunk(lg, ch, band_of[ch])
                    pend.append(ch)
        stamp(6)
    tail("L", 5, 9, bandL, [6, 7, 8, 9, 4, 5])
    a("s_branch LA_red")
    a.label("LA_tailH")
    tail("H", F, nH_dma, bandH, [5])
    a.label("LA_red")
    a("v_and_b32 %s, 7, %s" % (v(vT0), v(vLane)))
    a("v_lshrrev_b32 %s, 4, %s" % (v(vT1), v(vLane)))
    a("v_xor_b32 %s, %s, %s" % (v(vT1), v(vT1), v(vT0)))
    a("v_lshlrev_b32 %s, 4, %s" % (v(vT1), v(vT1)))
    a("v_lshl_add_u32 %s, %s, 8, %s" % (v(vT1), v(vT0), v(vT1)))
    a("v_bfe_u32 %s, %s, 3, 1" % (v(vT2), v(vLane)))
    a("v_lshl_add_u32 %s, %s, 14, %s" % (v(vT1), v(vT2), v(vT1)))
    wa = 16
    a("v_add_u32 %s, %s, %s" % (v(wa), s(sM), v(vT1)))
    a("v_xor_b32 %s, 64, %s" % (v(wa + 1), v(wa)))
    a("v_add_u32 %s, 0x10000, %s" % (v(wa + 2), v(wa)))
    a("v_add_u32 %s, 0x10000, %s" % (v(wa + 3), v(wa + 1)))
    a("v_lshrrev_b32 %s, 3, %s" % (v(vT2), v(vLane)))
    a("v_lshlrev_b32 %s, 1, %s" % (v(vT3), v(vT0)))
    a("v_xor_b32 %s, %s, %s" % (v(vT3), v(vT3), v(vT2)))
    a("v_lshlrev_b32 %s, 4, %s" % (v(vT3), v(vT3)))
    a("v_lshl_add_u32 %s, %s, 8, %s" % (v(vT3), v(vT2), v(vT3)))
    a("s_lshl_b32 %s, %s, 14" % (s(sT0), s(sW)))
    a("v_add_u32 %s, %s, %s" % (v(vT3), s(sT0), v(vT3)))
    a("v_xor_b32 %s, 16, %s" % (v(vT1), v(vT3)))
    a("v_lshlrev_b32 %s, 11, %s" % (v(vT2), v(vT2)))
    a("v_lshl_add_u32 %s, %s, 4, %s" % (v(vT2), v(vT0), v(vT2)))
    a("s_lshl_b32 %s, %s, 17" % (s(sT1), s(sQT)))
    a("s_add_u32 %s, %s, %s" % (s(sT0), s(sT0), s(sT1)))
    a("s_add_u32 %s, %s, %s" % (s(sT0), s(sT0), s(sNTo)))
    for u in range(4):
        for nb in range(4):
            a("ds_write_b128 %s, %s offset:%d" % (v(wa + 2 * (u // 2) + (nb % 2)), v(vAcc + (u * 4 + nb) * 4, 4), (u % 2) * 2 * BAND + (nb // 2) * 128))
    a("s_waitcnt lgkmcnt(0)")
    a("s_barrier")
    vR = 48
    for p in range(8):
        a("ds_read_b128 %s, %s offset:%d" % (v(vR + p * 8, 4), v(vT3), p * 2048))
        a("ds_read_b128 %s, %s offset:%d" % (v(vR + p * 8 + 4, 4), v(vT1), p * 2048))
    for p in range(1, 8):
        a("s_waitcnt lgkmcnt(%d)" % (14 - 2 * p))
        for i in range(8):
            a("v_add_f32 %s, %s, %s" % (v(vR + i), v(vR + p * 8 + i), v(vR + i)))
    for i in range(4):
        a("v_cvt_pk_bf16_f32 %s, %s, %s" % (v(24 + i), v(vR + 2 * i), v(vR + 2 * i + 1)))
    a("buffer_store_dwordx4 %s, %s, %s, %s offen" % (v(24, 4), v(vT2), s(rOut, 4), s(sT0)))
    if ts:
        a("s_waitcnt vmcnt(0)")
        stamp(7)
        a("s_waitcnt lgkmcnt(0)")
        for i in range(8): a("v_mov_b32 v%d, %s" % (24 + i, s(sTS + 2 * i)))
        a("s_lshl_b32 %s, s2, 8" % s(sT0))
        a("s_lshl_b32 %s, %s, 5" % (s(sT1), s(sW)))
        a("s_add_u32 %s, %s, %s" % (s(sT0), s(sT0), s(sT1)))
        a("s_add_u32 %s, %s, 0x1000000" % (s(sT0), s(sT0)))
        a("v_mov_b32 v8, 0")
        a("buffer_store_dwordx4 v[24:27], v8, %s, %s offen" % (s(rO, 4), s(sT0)))
        a("buffer_store_dwordx4 v[28:31], v8, %s, %s offen offset:16" % (s(rO, 4), s(sT0)))
    a.label("LA_end")
    a("s_endpgm")
    a.label("LA_side")
    for hw in range(2):
        a("s_add_u32 %s, %s, %s" % (s(sT0), s(sWB), s(sWK0)))
        if hw: a("s_add_u32 %s, %s, 0x400000" % (s(sT0), s(sT0)))
        for ch in range(4):
            for hp in range(2):
                a("s_add_u32 m0, %s, %d" % (s(sM), (6 + ch) * BAND + hw * 8192 + hp * 1024))
                if ch + hp: a("s_add_u32 %s, %s, 16384" % (s(sT0), s(sT0)))
                else: a("s_nop 0")
                a("buffer_load_dwordx4 %s, %s, %s offen lds" % (v(vEW), s(rWO, 4), s(sT0)))
    a("s_branch LA_sideb")
    for tag, Sc, Sn in (("0", vS0, vS1), ("1", vS1, vS0)):
        a.label("LA_rare%s" % tag)
        for qb, t in ((0, vTs), (1, vTs2)):
            b_ = Sc + 8 * qb
            a("v_max3_f32 %s, %s, %s, %s" % (v(t), v(b_), v(b_ + 1), v(b_ + 2)))
            a("v_max3_f32 %s, %s, %s, %s" % (v(t), v(t), v(b_ + 3), v(b_ + 4)))
            a("v_max3_f32 %s, %s, %s, %s" % (v(t), v(t), v(b_ + 5), v(b_ + 6)))
            a("v_max_f32 %s, %s, %s" % (v(t), v(t), v(b_ + 7)))
        xreduce((vTs, vTs2), "v_max_f32")
        for qb, t in ((0, vTs), (1, vTs2)):
            al = vT2 + qb
            a("v_max_f32 %s, %s, %s" % (v(t), s(sDmin), v(t)))
            a("v_max_f32 %s, 0, %s" % (v(al), v(t)))
            a("v_sub_f32 %s, 0, %s" % (v(al), v(al)))
            a("v_exp_f32 %s, %s" % (v(al), v(al)))
        for qb, t in ((0, vTs), (1, vTs2)):
            for j in range(4): a("v_sub_f32 %s, %s, %s" % (v(vNM + 4 * qb + j), v(vNM + 4 * qb + j), v(t)))
            for j in range(8):
                a("v_sub_f32 %s, %s, %s" % (v(Sc + 8 * qb + j), v(Sc + 8 * qb + j), v(t)))
                a("v_sub_f32 %s, %s, %s" % (v(Sn + 8 * qb + j), v(Sn + 8 * qb + j), v(t)))
        for i in range(64):
            a("v_mul_f32 %s, %s, %s" % (v(vO + i), v(vT2 + ((i // 4) % 2)), v(vO + i)))
        a("v_mul_f32 %s, %s, %s" % (v(vL0), v(vT2), v(vL0)))
        a("v_mul_f32 %s, %s, %s" % (v(vL1), v(vT3), v(vL1)))
        for j in range(16): a(ex(j, Sc))
        a("s_nop 0")
        for g in range(8):
            emit(adds(g)); a(cvt(g))
        a("s_mov_b32 %s, 0x%08x" % (s(sThr), f2u(THR)))
        a("s_mov_b32 %s, 0" % s(sDmin))
        a("s_branch LA_back%s" % tag)
    a.label("LA_codeend")
    return NV, NS

def main(out, **kw):
    a = Asm()
    NA = "standalone__mha_block_cached__near_ridge_kernel"
    a.raw("; @launch grid=(256,1,1) block=(512,1,1) lds=163840")
    a.raw('.amdgcn_target "amdgcn-amd-amdhsa--gfx950"')
    a.raw(".text")
    nv, ns = gen(a, NA, **kw)
    a.raw('.section .rodata,"a"')
    kernel_desc(a, NA, nv, ns)
    open(out, "w").write(a.text())

if __name__ == "__main__":
    main("k22.s", warm=2)
    main("k22_ts.s", ts=1, warm=2)
```
